```python
import torch

def _softmax(x, axis=-1):
    return torch.softmax(x, dim=axis)
def _gelu(x):
    return torch.nn.functional.gelu(x, approximate="tanh")
def _silu(x):
    return torch.nn.functional.silu(x)
def _sigmoid(x):
    return torch.sigmoid(x)
def _layernorm(x, axis=-1, eps=1e-5):
    m = x.mean(dim=axis, keepdim=True)
    v = x.var(dim=axis, keepdim=True, unbiased=False)
    return (x - m) / torch.sqrt(v + eps)
def _scatter_add(tgt, idx, src, axis=0):
    return tgt.clone().index_add_(axis, idx, src)
def _segment_sum(src, seg, n):
    out = torch.zeros((n,) + src.shape[1:], dtype=src.dtype)
    return out.index_add_(0, seg, src)
def _pad(x, pw):
    flat = tuple(v for pair in reversed(pw) for v in pair)
    return torch.nn.functional.pad(x, flat)

kernel_name = 'gated_mix__spectral_gfnet__glu_gated_geglu__prompt'

def setup_inputs():

    _w = (lambda a: (lambda t: t.to(torch.bfloat16) if t.is_floating_point() else t)(torch.as_tensor(a)))
    def _A_setup():
        B, S, D = 1, 2048, 448
        Df = D // 2 + 1
        return {
            "x": _w((lambda *s: torch.randn(*s, dtype=torch.bfloat16) * 0.05)(B, S, D)),
            "w_r": _w((lambda *s: torch.randn(*s, dtype=torch.bfloat16) * 0.05)(S, Df) * 0.02),
            "w_i": _w((lambda *s: torch.randn(*s, dtype=torch.bfloat16) * 0.05)(S, Df) * 0.02),
        }
    _A_in = _A_setup()

    def _B_setup():
        B, S, Dm, Df = 1, 2048, 448, 1792
        return {
            "x": _w((lambda *s: torch.randn(*s, dtype=torch.bfloat16) * 0.05)(B, S, Dm)),
            "w_gate": _w((lambda *s: torch.randn(*s, dtype=torch.bfloat16) * 0.2)(Dm, Df) * (Dm ** -0.5)),
            "w_up": _w((lambda *s: torch.randn(*s, dtype=torch.bfloat16) * 0.2)(Dm, Df) * (Dm ** -0.5)),
            "w_down": _w((lambda *s: torch.randn(*s, dtype=torch.bfloat16) * 0.2)(Df, Dm) * (Df ** -0.5)),
        }
    _B_in = _B_setup()

    return {
        "A_x": _A_in["x"],
        "A_w_r": _A_in["w_r"],
        "A_w_i": _A_in["w_i"],
        "B_x": _B_in["x"],
        "B_w_gate": _B_in["w_gate"],
        "B_w_up": _B_in["w_up"],
        "B_w_down": _B_in["w_down"],
        "gate_w": _w((lambda *s: torch.randn(*s, dtype=torch.bfloat16) * 0.05)(448) * 16.0),
    }

def reference(A_x, A_w_r, A_w_i, B_x, B_w_gate, B_w_up, B_w_down, gate_w):
    def _A_ref(x, w_r, w_i):
        B, S, D = x.shape
        X = (lambda x, axes=(-2,-1): torch.fft.rfft2(x.float(), dim=axes))(x, axes=(-2, -1))
        W = w_r + 1j * w_i
        X = X * W
        y = (lambda x, s, axes=(-2,-1): torch.fft.irfft2(x, s=s, dim=axes).to(torch.bfloat16))(X, (S, D), axes=(-2, -1))
        return y

    def _B_ref(x, w_gate, w_up, w_down):
        g = torch.einsum("bsd,df->bsf", x, w_gate)
        u = torch.einsum("bsd,df->bsf", x, w_up)
        h = _gelu(g) * u
        return torch.einsum("bsf,fd->bsd", h, w_down)

    x = A_x
    g = _sigmoid((x * gate_w).sum(-1, keepdims=True))
    a = _A_ref(x, A_w_r, A_w_i)
    b = _B_ref(x, B_w_gate, B_w_up, B_w_down)
    return g * a + (1 - g) * b
```

```python
import re

TRANS = ("v_exp_f32", "v_log_f32", "v_rcp_f32", "v_rsq_f32", "v_sqrt_f32", "v_sin_f32", "v_cos_f32",
         "v_rcp_iflag_f32")

def _regs(tok):
    tok = tok.strip()
    tok = re.sub(r"^-|^\|", "", tok)
    m = re.match(r"^(?:abs\()?-?([vsa])\[(\d+):(\d+)\]\)?$", tok)
    if m:
        return {(m.group(1), i) for i in range(int(m.group(2)), int(m.group(3)) + 1)}
    m = re.match(r"^(?:abs\()?-?([vsa])(\d+)\)?$", tok)
    if m:
        return {(m.group(1), int(m.group(2)))}
    if tok in ("vcc", "exec", "m0", "scc"):
        return {(tok, 0)}
    if tok in ("vcc_lo", "vcc_hi"):
        return {("vcc", 0)}
    return set()

class Inst:
    __slots__ = ("text", "mn", "ops", "dst", "src", "cls", "srcC", "passes", "ab", "nops", "mods")
    def __init__(self, text):
        self.text = text
        body = text.split(";")[0].strip()
        parts = body.split(None, 1)
        self.mn = parts[0]
        rest = parts[1] if len(parts) > 1 else ""
        ops = [o.strip() for o in rest.split(",")] if rest else []
        self.mods = ""
        if ops:
            last = ops[-1].split(None, 1)
            ops[-1] = last[0]
            self.mods = last[1] if len(last) > 1 else ""
        self.ops = ops
        mn = self.mn
        self.dst = set(); self.src = set(); self.srcC = set(); self.ab = set(); self.passes = 0; self.nops = 1
        R = [_regs(o) for o in ops]
        if mn.startswith("v_mfma"):
            self.cls = "mfma"
            self.dst = R[0]; self.ab = R[1] | R[2]; self.srcC = R[3]; self.src = self.ab | self.srcC
            self.passes = 8 if "32x32x16" in mn else 4 if "16x16x32" in mn else 16
        elif mn.startswith("v_"):
            self.cls = "trans" if mn.replace("_e32", "").replace("_e64", "") in TRANS else "valu"
            if mn.startswith("v_permlane") and "swap" in mn:
                self.dst = R[0] | R[1]; self.src = R[0] | R[1]
            elif mn.startswith("v_cmp"):
                self.dst = R[0]; self.src = set().union(*R[1:])
            elif mn.startswith(("v_add_co", "v_sub_co", "v_addc_co", "v_subb_co", "v_mad_u64")):
                self.dst = R[0] | R[1]; self.src = set().union(*R[2:])
            elif mn.startswith(("v_fmac", "v_pk_fmac", "v_dot2c")):
                self.dst = R[0]; self.src = set().union(*R)
            elif mn == "v_nop":
                pass
            else:
                self.dst = R[0]; self.src = set().union(*R[1:]) if len(R) > 1 else set()
                if mn.startswith("v_cndmask") and len(ops) == 3:
                    self.src |= {("vcc", 0)}
        elif mn.startswith(("buffer_", "global_", "flat_")):
            self.cls = "vmem"
            if "load" in mn and "lds" not in self.mods.split() and "_lds_" not in mn:
                self.dst = R[0]; self.src = set().union(*R[1:])
            else:
                self.src = set().union(*R) if R else set()
                if "lds" in self.mods.split() or "_lds_" in mn:
                    self.src |= {("m0", 0)}
        elif mn.startswith("ds_"):
            self.cls = "ds"
            if mn.startswith(("ds_read", "ds_bpermute", "ds_permute", "ds_swizzle")):
                self.dst = R[0]; self.src = set().union(*R[1:])
            else:
                self.src = set().union(*R)
        elif mn.startswith("s_"):
            self.cls = "salu"
            if mn == "s_nop":
                self.nops = int(ops[0], 0) + 1
            elif mn.startswith(("s_cmp", "s_cbranch", "s_branch", "s_waitcnt", "s_barrier", "s_endpgm", "s_setprio", "s_sleep")):
                self.src = set().union(*R) if R else set()
            else:
                self.dst = R[0] if R else set(); self.src = set().union(*R[1:]) if len(R) > 1 else set()
        else:
            raise ValueError("unknown instr " + text)

def need(p, c):
    n = 0
    pv = p.cls in ("valu", "trans")
    cv = c.cls in ("valu", "trans")
    if pv and c.cls == "mfma" and (p.dst & c.src):
        n = max(n, 2)
    if p.cls == "mfma":
        P = p.passes
        if c.cls == "mfma":
            if p.dst & c.ab:
                n = max(n, {4: 8, 8: 12, 16: 20}[P])
            if p.dst & c.srcC:
                if not (c.srcC == p.dst and c.passes == P):
                    n = max(n, {4: 6, 8: 10, 16: 18}[P])
        elif cv or c.cls in ("vmem", "ds"):
            if p.dst & (c.src | c.dst):
                n = max(n, {4: 8, 8: 12, 16: 20}[P])
        if cv and (p.srcC & c.dst):
            n = max(n, {4: 3, 8: 7, 16: 15}[P])
    if p.cls == "trans" and c.cls == "valu" and (p.dst & c.src):
        n = max(n, 1)
    if pv:
        sd = {r for r in p.dst if r[0] in ("s", "vcc")}
        if sd:
            if cv and (sd & c.src):
                n = max(n, 4 if c.mn.startswith(("v_readlane", "v_writelane")) else 2)
            if c.cls == "vmem" and (sd & c.src):
                n = max(n, 5)
            if c.cls == "salu" and (sd & c.src):
                n = max(n, 2)
        vd = {r for r in p.dst if r[0] in ("v", "a")}
        if vd & c.src:
            if c.mn.startswith(("v_readfirstlane", "v_readlane")):
                n = max(n, 1)
            if c.mn.startswith("v_permlane") or "dpp" in c.mods or "row_" in c.mods or "quad_perm" in c.mods:
                n = max(n, 2)
    if p.cls == "salu" and ("m0", 0) in p.dst and c.cls == "vmem" and ("m0", 0) in c.src:
        n = max(n, 1)
    if p.cls == "vmem" and "store" in p.mn and ("x4" in p.mn or "x3" in p.mn):
        data = _regs(p.ops[0]) if p.mn.startswith("buffer") else _regs(p.ops[1])
        if data & c.dst:
            n = max(n, 2)
    return n

class Asm:
    def __init__(self):
        self.items = []
    def __call__(self, text):
        for line in text.strip().split("\n"):
            line = line.strip()
            if not line:
                continue
            if line.startswith(";") or line.endswith(":") or line.startswith("."):
                self.items.append(line)
            else:
                self.items.append(Inst(line))
    def raw(self, s):
        self.items.append(s)
    def finalize(self):
        out = []
        hist = []
        nins = 0
        for it in self.items:
            if isinstance(it, str):
                out.append(it)
                continue
            req = 0
            dist = 0
            for p in reversed(hist):
                n = need(p, it)
                if n > dist:
                    req = max(req, n - dist)
                dist += p.nops
                if dist >= 24:
                    break
            while req > 0:
                k = min(req, 16)
                nop = Inst("s_nop %d" % (k - 1))
                out.append("    " + nop.text); hist.append(nop); req -= k; nins += 1
            out.append("    " + it.text)
            hist.append(it)
            if len(hist) > 40:
                hist = hist[-40:]
        self.nops_inserted = nins
        return "\n".join(out) + "\n"

def kernel_header(name):
    return ".globl %s\n.p2align 8\n.type %s,@function\n%s:" % (name, name, name)

def kernel_desc(name, vgpr, sgpr=102, accum=None):
    accum = accum if accum is not None else (vgpr + 3) // 4 * 4
    return """.p2align 6
.amdhsa_kernel %s
  .amdhsa_next_free_vgpr %d
  .amdhsa_next_free_sgpr %d
  .amdhsa_accum_offset %d
  .amdhsa_group_segment_fixed_size 0
  .amdhsa_kernarg_size 88
  .amdhsa_user_sgpr_count 2
  .amdhsa_user_sgpr_kernarg_segment_ptr 1
  .amdhsa_system_sgpr_workgroup_id_x 1
.end_amdhsa_kernel""" % (name, vgpr, sgpr, accum)
```

```python
import sys, struct, math
sys.path.insert(0, "tools")
from asmgen import *

def f2u(x):
    return struct.unpack("<I", struct.pack("<f", x))[0]
def fl(x):
    return "0x%08x" % f2u(x)

H_OFF    = 0x0000000
PF_OFF   = 0x0700000
WT_OFF   = 0x0900000
GATE_OFF = 0x0B00000
GF_OFF   = 0x0B10000
ZT_OFF   = 0x0C00000
BQ_OFF   = 0x0E00000
WS_SIZE  = 0x1000000

K1 = "k1_gateup_dft_kernel"
K2 = "k2_down_fft_kernel"
K3 = "k3_idft_mix_kernel"

LOG2E = 1.4426950408889634

def srd(a, base, ptr, nbytes):
    a("s_mov_b32 s%d, s%d" % (base, ptr))
    a("s_mov_b32 s%d, s%d" % (base + 1, ptr + 1))
    a("s_mov_b32 s%d, %d" % (base + 2, nbytes))
    a("s_mov_b32 s%d, 0x00020000" % (base + 3))

sX, sWg, sWu, sWS, sWr, sWi, sGw = 8, 12, 16, 20, 24, 28, 32
sWave = 36

def k1_side_loads(a):
    a("""
    s_and_b32 s40, s2, 31
    s_lshr_b32 s41, s2, 5
    s_lshl_b32 s41, s41, 3
    v_and_b32 v116, 255, v0
    v_lshrrev_b32 v117, 8, v0
    v_lshlrev_b32 v117, 2, v117
    v_add_u32 v117, s41, v117
    v_lshlrev_b32 v118, 5, v117
    v_add_u32 v118, s40, v118
    v_mul_u32_u24 v118, 450, v118
    v_lshl_add_u32 v118, v116, 1, v118
    s_mov_b32 s42, 14400
    s_mov_b32 s43, 28800
    s_mov_b32 s44, 43200
    buffer_load_ushort v100, v118, s[24:27], 0 offen
    buffer_load_ushort v101, v118, s[24:27], s42 offen
    buffer_load_ushort v102, v118, s[24:27], s43 offen
    buffer_load_ushort v103, v118, s[24:27], s44 offen
    buffer_load_ushort v104, v118, s[28:31], 0 offen
    buffer_load_ushort v105, v118, s[28:31], s42 offen
    buffer_load_ushort v106, v118, s[28:31], s43 offen
    buffer_load_ushort v107, v118, s[28:31], s44 offen
    """)
    a("""
    v_lshlrev_b32 v118, 5, v116
    v_add_u32 v118, s40, v118
    v_lshl_add_u32 v118, v118, 6, v117
    v_lshlrev_b32 v118, 2, v118
    v_add_u32 v118, 0x%x, v118
    """ % WT_OFF)
    a("""
    s_lshl_b32 s45, s2, 3
    s_add_u32 s45, s45, s36
    s_mul_i32 s46, s45, 896
    v_lshlrev_b32 v119, 4, v1
    v_add_u32 v120, s46, v119
    v_mov_b32 v121, 0x7ffffff0
    v_cmp_gt_u32 vcc, 56, v1
    v_cndmask_b32 v120, v121, v120, vcc
    buffer_load_dwordx4 v[108:111], v120, s[8:11], 0 offen
    buffer_load_dwordx4 v[112:115], v119, s[32:35], 0 offen
    """)

def k1_gf_compute(a):
    a("""
    s_mul_i32 s47, s45, 2185
    s_lshr_b32 s47, s47, 16
    s_mul_i32 s48, s47, 30
    s_sub_u32 s48, s45, s48
    s_cmp_ge_u32 s48, 15
    s_cselect_b32 s49, 15, 0
    s_cselect_b32 s50, 0x3e800000, 0
    s_cselect_b32 s51, 0, 1.0
    s_sub_u32 s49, s48, s49
    s_lshl_b32 s49, s49, 4
    s_lshl_b32 s52, s47, 5
    v_and_b32 v129, 31, v1
    v_add_u32 v129, s52, v129
    v_cvt_f32_u32 v129, v129
    v_mul_f32 v129, %s, v129
    v_lshrrev_b32 v130, 5, v1
    v_lshlrev_b32 v130, 3, v130
    v_add_u32 v130, s49, v130
    v_cvt_f32_u32 v130, v130
    v_mov_b32 v131, s50
    v_mov_b32 v132, s51
    v_mov_b32 v133, 2.0
    v_mov_b32 v134, 0
    v_mov_b32 v135, %s
    """ % (fl(1.0 / 448.0), fl(224.0)))
    for i in range(8):
        t = 136 + i
        a("v_add_f32 v144, %s, v130" % fl(float(i)))
        a("v_fma_f32 v%d, v144, v129, v131" % t)
        a("v_cos_f32 v%d, v%d" % (t, t))
        a("v_cmp_lt_f32 vcc, v135, v144")
        a("v_cndmask_b32 v145, v133, v134, vcc")
        a("v_cmp_eq_f32 vcc, v135, v144")
        a("v_cndmask_b32 v145, v145, v132, vcc")
        a("v_cmp_eq_f32 vcc, 0, v144")
        a("v_cndmask_b32 v145, v145, v132, vcc")
        a("v_mul_f32 v%d, v%d, v145" % (t, t))
    for i in range(4):
        a("v_cvt_pk_bf16_f32 v%d, v%d, v%d" % (124 + i, 136 + 2 * i, 137 + 2 * i))
    a("""
    s_lshl_b32 s53, s45, 10
    s_add_u32 s53, s53, 0x%x
    s_cmp_lt_u32 s45, 420
    s_cselect_b32 s53, s53, 0x7ffffff0
    v_lshlrev_b32 v128, 4, v1
    v_add_u32 v128, s53, v128
    """ % GF_OFF)

def k1_side_compute_store(a):
    for q in range(4):
        a("v_lshl_or_b32 v%d, v%d, 16, v%d" % (100 + q, 104 + q, 100 + q))
    a("v_mov_b32 v136, 0")
    for q in range(4):
        a("v_lshlrev_b32 v137, 16, v%d" % (108 + q))
        a("v_lshlrev_b32 v138, 16, v%d" % (112 + q))
        a("v_fmac_f32 v136, v137, v138")
        a("v_and_b32 v137, 0xffff0000, v%d" % (108 + q))
        a("v_and_b32 v138, 0xffff0000, v%d" % (112 + q))
        a("v_fmac_f32 v136, v137, v138")
    for sh in (1, 2, 4, 8):
        a("v_add_f32_dpp v136, v136, v136 row_shr:%d row_mask:0xf bank_mask:0xf bound_ctrl:0" % sh)
    a("""
    v_readlane_b32 s54, v136, 15
    v_readlane_b32 s55, v136, 31
    v_readlane_b32 s56, v136, 47
    v_readlane_b32 s57, v136, 63
    v_mov_b32 v136, s54
    v_add_f32 v136, s55, v136
    v_add_f32 v136, s56, v136
    v_add_f32 v136, s57, v136
    v_mul_f32 v136, %s, v136
    v_exp_f32 v136, v136
    v_add_f32 v136, 1.0, v136
    v_rcp_f32 v136, v136
    s_and_b32 s54, s45, 63
    s_lshl_b32 s54, s54, 5
    s_lshr_b32 s55, s45, 6
    s_add_u32 s54, s54, s55
    s_lshl_b32 s54, s54, 2
    s_add_u32 s54, s54, 0x%x
    v_mov_b32 v137, s54
    buffer_store_dwordx4 v[124:127], v128, s[20:23], 0 offen
    v_cmp_gt_u32 vcc, 225, v116
    s_and_saveexec_b64 s[58:59], vcc
    buffer_store_dwordx4 v[100:103], v118, s[20:23], 0 offen
    s_mov_b64 exec, 1
    buffer_store_dword v136, v137, s[20:23], 0 offen
    s_mov_b64 exec, s[58:59]
    """ % (fl(-LOG2E), GATE_OFF))

def gen_k1(a):
    a.raw(kernel_header(K1))
    a("""
    s_cmp_ge_u32 s2, 256
    s_cbranch_scc1 K1_END
    s_load_dwordx2 s[4:5], s[0:1], 0
    s_load_dwordx4 s[60:63], s[0:1], 8
    s_load_dwordx4 s[64:67], s[0:1], 32
    s_load_dwordx2 s[68:69], s[0:1], 56
    s_load_dwordx2 s[70:71], s[0:1], 80
    v_and_b32 v1, 63, v0
    v_lshrrev_b32 v2, 6, v0
    v_readfirstlane_b32 s36, v2
    s_waitcnt lgkmcnt(0)
    """)
    srd(a, sX, 4, 1835008)
    srd(a, sWr, 60, 921600)
    srd(a, sWi, 62, 921600)
    srd(a, sWg, 64, 1605632)
    srd(a, sWu, 66, 1605632)
    srd(a, sGw, 68, 896)
    srd(a, sWS, 70, WS_SIZE)
    k1_side_loads(a)
    a("""
    s_cmp_ge_u32 s2, 224
    s_cbranch_scc1 K1_DFT
    """)
    gen_k1_gateup(a)
    a("K1_DFT:")
    gen_k1_dft(a)
    a("K1_END:")
    a("s_endpgm")

def gen_k1_gateup(a):
    a("""
    s_and_b32 s72, s2, 7
    s_lshr_b32 s73, s2, 3
    s_and_b32 s74, s72, 1
    s_lshl_b32 s74, s74, 2
    s_and_b32 s75, s73, 3
    s_add_u32 s74, s74, s75
    s_lshr_b32 s75, s72, 1
    s_mul_i32 s75, s75, 7
    s_lshr_b32 s76, s73, 2
    s_add_u32 s75, s75, s76
    """)
    a("""
    s_lshl_b32 s76, s74, 3
    s_add_u32 s76, s76, s36
    s_mul_i32 s76, s76, 896
    v_lshrrev_b32 v8, 3, v1
    v_mul_u32_u24 v9, 57344, v8
    v_add_u32 v9, s76, v9
    v_lshrrev_b32 v10, 4, v1
    v_and_b32 v11, 7, v1
    v_xor_b32 v12, v11, v10
    v_xor_b32 v13, 4, v12
    v_lshl_add_u32 v4, v12, 4, v9
    v_lshl_add_u32 v5, v13, 4, v9
    v_add_u32 v5, 458752, v5
    v_add_u32 v6, 917504, v4
    v_add_u32 v7, 917504, v5
    """)
    a("""
    s_lshl_b32 s77, s36, 3
    v_add_u32 v9, s77, v8
    v_mul_u32_u24 v9, 3584, v9
    v_and_b32 v10, 1, v10
    v_lshlrev_b32 v10, 2, v10
    v_xor_b32 v10, v11, v10
    v_lshl_add_u32 v3, v10, 4, v9
    s_lshl_b32 s77, s75, 7
    v_add_u32 v3, s77, v3
    s_lshl_b32 s78, s36, 12
    s_lshl_b32 s79, s36, 10
    """)
    def issue_stage(ks):
        sb = (ks % 3) * 49152
        a("s_mov_b32 s80, %d" % (ks * 128))
        a("s_mov_b32 s81, %d" % (ks * 229376))
        for q in range(4):
            a("s_add_u32 m0, s78, %d" % (sb + q * 1024))
            a("buffer_load_dwordx4 v%d, s[8:11], s80 offen lds" % (4 + q))
        a("s_add_u32 m0, s79, %d" % (sb + 32768))
        a("buffer_load_dwordx4 v3, s[12:15], s81 offen lds")
        a("s_add_u32 m0, s79, %d" % (sb + 40960))
        a("buffer_load_dwordx4 v3, s[16:19], s81 offen lds")
    for ks in range(3):
        issue_stage(ks)
    a("""
    s_lshr_b32 s82, s36, 1
    s_and_b32 s83, s36, 1
    s_lshl_b32 s84, s82, 13
    v_and_b32 v8, 31, v1
    v_lshlrev_b32 v8, 7, v8
    v_add_u32 v8, s84, v8
    v_lshrrev_b32 v9, 5, v1
    v_lshrrev_b32 v10, 1, v1
    v_and_b32 v10, 7, v10
    """)
    for j in range(4):
        a("v_add_u32 v11, %d, v9" % (2 * j))
        a("v_xor_b32 v11, v11, v10")
        a("v_lshl_add_u32 v%d, v11, 4, v8" % (14 + j))
        a("v_add_u32 v%d, 49152, v%d" % (18 + j, 14 + j))
        a("v_add_u32 v%d, 98304, v%d" % (22 + j, 14 + j))
    a("""
    v_and_b32 v8, 15, v1
    v_lshrrev_b32 v9, 2, v8
    v_lshrrev_b32 v10, 5, v1
    v_lshl_add_u32 v9, v10, 3, v9
    v_lshlrev_b32 v9, 7, v9
    v_lshrrev_b32 v10, 4, v1
    v_and_b32 v10, 1, v10
    v_lshlrev_b32 v10, 1, v10
    v_lshrrev_b32 v11, 1, v8
    v_and_b32 v11, 1, v11
    v_add_u32 v10, v10, v11
    s_lshl_b32 s84, s83, 2
    v_add_u32 v10, s84, v10
    v_lshrrev_b32 v11, 3, v8
    v_lshlrev_b32 v11, 2, v11
    v_xor_b32 v10, v10, v11
    v_lshl_add_u32 v9, v10, 4, v9
    v_and_b32 v11, 1, v8
    v_lshl_add_u32 v26, v11, 3, v9
    v_add_u32 v27, 49152, v26
    v_add_u32 v28, 98304, v26
    """)
    ACC = 160
    for r in range(64):
        a("v_mov_b32 v%d, 0" % (ACC + r))
    k1_gf_compute(a)
    a("s_waitcnt vmcnt(18)")
    k1_side_compute_store(a)
    FR = [32, 48]
    def reads(g):
        st, j = (g >> 2) % 3, g & 3
        f = FR[g & 1]
        for u in range(2):
            for rd in range(2):
                a("ds_read_b64_tr_b16 v[%d:%d], v%d offset:%d" % (f + 4 * u + 2 * rd, f + 4 * u + 2 * rd + 1, 26 + st,
                                                               32768 + 8192 * u + (16 * j + 4 * rd) * 128))
        for tt in range(2):
            a("ds_read_b128 v[%d:%d], v%d offset:%d" % (f + 8 + 4 * tt, f + 11 + 4 * tt, 14 + 4 * st + j, tt * 4096))
    def mfmas(g):
        f = FR[g & 1]
        for u in range(2):
            for tt in range(2):
                c = ACC + 32 * u + 16 * tt
                a("v_mfma_f32_32x32x16_bf16 v[%d:%d], v[%d:%d], v[%d:%d], v[%d:%d]" %
                  (c, c + 15, f + 4 * u, f + 4 * u + 3, f + 8 + 4 * tt, f + 11 + 4 * tt, c, c + 15))
    vm = {0: 15, 1: 9, 2: 9, 3: 6, 4: 6, 5: 6, 6: 0}
    a("s_waitcnt vmcnt(%d)" % vm[0])
    a("s_barrier")
    reads(0)
    for g in range(28):
        i, j = g >> 2, g & 3
        if j == 3 and i < 6:
            a("s_waitcnt vmcnt(%d) lgkmcnt(0)" % vm[i + 1])
            a("s_barrier")
            if i + 3 <= 6:
                issue_stage(i + 3)
            reads(g + 1)
            mfmas(g)
        elif g == 27:
            a("s_waitcnt lgkmcnt(0)")
            mfmas(g)
        else:
            reads(g + 1)
            a("s_waitcnt lgkmcnt(6)")
            mfmas(g)
    c0 = -2.0 * 0.7978845608028654 * LOG2E
    c1 = c0 * 0.044715
    a("v_mov_b32 v64, %s" % fl(c0))
    a("""
    s_lshl_b32 s84, s74, 3
    s_lshl_b32 s85, s82, 1
    s_add_u32 s84, s84, s85
    s_mul_i32 s84, s84, 112
    s_lshl_b32 s85, s75, 1
    s_add_u32 s85, s85, s83
    s_lshl_b32 s85, s85, 1
    s_add_u32 s84, s84, s85
    s_lshl_b32 s84, s84, 10
    s_add_u32 s85, s84, 114688
    v_lshlrev_b32 v65, 4, v1
    """)
    for tt in range(2):
        G = ACC + 16 * tt; U = ACC + 32 + 16 * tt
        for r0 in range(0, 16, 4):
            T = [66 + k for k in range(4)]
            Y = [70 + k for k in range(4)]
            for k in range(4): a("v_mul_f32 v%d, v%d, v%d" % (T[k], G + r0 + k, G + r0 + k))
            for k in range(4): a("v_fmamk_f32 v%d, v%d, %s, v64" % (T[k], T[k], fl(c1)))
            for k in range(4): a("v_mul_f32 v%d, v%d, v%d" % (T[k], T[k], G + r0 + k))
            for k in range(4): a("v_exp_f32 v%d, v%d" % (T[k], T[k]))
            for k in range(4): a("v_mul_f32 v%d, v%d, v%d" % (Y[k], G + r0 + k, U + r0 + k))
            for k in range(4): a("v_add_f32 v%d, 1.0, v%d" % (T[k], T[k]))
            for k in range(4): a("v_rcp_f32 v%d, v%d" % (T[k], T[k]))
            for k in range(4): a("v_mul_f32 v%d, v%d, v%d" % (Y[k], Y[k], T[k]))
            o = 76 + 8 * tt + r0 // 2
            a("v_cvt_pk_bf16_f32 v%d, v%d, v%d" % (o, Y[0], Y[1]))
            a("v_cvt_pk_bf16_f32 v%d, v%d, v%d" % (o + 1, Y[2], Y[3]))
        o = 76 + 8 * tt
        so = "s84" if tt == 0 else "s85"
        a("buffer_store_dwordx4 v[%d:%d], v65, s[20:23], %s offen" % (o, o + 3, so))
        a("buffer_store_dwordx4 v[%d:%d], v65, s[20:23], %s offen offset:1024" % (o + 4, o + 7, so))
    a("s_endpgm")

def gen_k1_dft(a):
    a("""
    s_sub_u32 s72, s2, 224
    s_lshr_b32 s74, s72, 1
    s_and_b32 s75, s72, 1
    """)
    a("""
    s_lshl_b32 s76, s74, 2
    s_lshr_b32 s77, s36, 1
    s_add_u32 s76, s76, s77
    s_mul_i32 s76, s76, 896
    s_and_b32 s77, s36, 1
    s_mul_i32 s77, s77, 917504
    s_add_u32 s76, s76, s77
    v_lshrrev_b32 v8, 3, v1
    v_mul_u32_u24 v9, 57344, v8
    v_add_u32 v9, s76, v9
    v_lshrrev_b32 v10, 4, v1
    v_and_b32 v11, 7, v1
    v_xor_b32 v12, v11, v10
    v_xor_b32 v13, 4, v12
    v_lshl_add_u32 v4, v12, 4, v9
    v_lshl_add_u32 v5, v13, 4, v9
    v_add_u32 v5, 458752, v5
    s_lshl_b32 s78, s36, 11
    """)
    for ks in range(7):
        a("s_mov_b32 s80, %d" % (ks * 128))
        for q in range(2):
            a("s_add_u32 m0, s78, %d" % (ks * 16384 + q * 1024))
            a("buffer_load_dwordx4 v%d, s[8:11], s80 offen lds" % (4 + q))
    a("""
    v_and_b32 v8, 31, v1
    v_lshlrev_b32 v8, 7, v8
    v_lshrrev_b32 v9, 5, v1
    v_lshrrev_b32 v10, 1, v1
    v_and_b32 v10, 7, v10
    """)
    for j in range(4):
        a("v_add_u32 v11, %d, v9" % (2 * j))
        a("v_xor_b32 v11, v11, v10")
        a("v_lshl_add_u32 v%d, v11, 4, v8" % (14 + j))
        a("v_add_u32 v%d, 65536, v%d" % (18 + j, 14 + j))
    a("""
    s_lshl_b32 s82, s75, 7
    s_lshl_b32 s83, s36, 4
    s_add_u32 s82, s82, s83
    v_and_b32 v8, 15, v1
    v_add_u32 v22, s82, v8
    v_cvt_f32_u32 v23, v22
    v_mul_f32 v23, %s, v23
    v_lshrrev_b32 v9, 5, v1
    v_lshlrev_b32 v9, 3, v9
    v_cvt_f32_u32 v9, v9
    v_lshrrev_b32 v10, 4, v1
    v_and_b32 v10, 1, v10
    v_cvt_f32_u32 v11, v10
    v_mul_f32 v11, 0.5, v11
    v_mul_f32 v11, 0.5, v11
    v_fma_f32 v24, v9, v23, v11
    """ % fl(1.0 / 448.0))
    a("""
    v_lshl_add_u32 v25, v22, 1, v10
    v_lshlrev_b32 v25, 12, v25
    s_lshr_b32 s84, s74, 3
    s_lshl_b32 s84, s84, 11
    s_lshl_b32 s85, s74, 2
    s_and_b32 s85, s85, 31
    s_lshl_b32 s85, s85, 4
    s_add_u32 s84, s84, s85
    s_add_u32 s84, s84, 0x%x
    v_add_u32 v25, s84, v25
    v_lshrrev_b32 v9, 5, v1
    v_lshl_add_u32 v25, v9, 9, v25
    """ % PF_OFF)
    ACC = 160
    for r in range(64):
        a("v_mov_b32 v%d, 0" % (ACC + r))
    k1_gf_compute(a)
    a("s_waitcnt vmcnt(14)")
    k1_side_compute_store(a)
    FR = [32, 48]
    FF = [64, 68]
    def reads(g):
        st, j = g >> 2, g & 3
        f = FR[g & 1]
        for tt in range(4):
            off = st * 16384 + tt * 4096
            base = 14 + j
            if off >= 65536:
                off -= 65536; base = 18 + j
            a("ds_read_b128 v[%d:%d], v%d offset:%d" % (f + 4 * tt, f + 4 * tt + 3, base, off))
    def fgen(g):
        f = FF[g & 1]
        for i in range(8):
            a("v_fmamk_f32 v%d, v23, %s, v24" % (72 + i, fl(float(16 * g + i))))
        for i in range(8):
            a("v_cos_f32 v%d, v%d" % (72 + i, 72 + i))
        for i in range(4):
            a("v_cvt_pk_bf16_f32 v%d, v%d, v%d" % (f + i, 72 + 2 * i, 73 + 2 * i))
    def mfmas(g):
        f = FR[g & 1]; ff = FF[g & 1]
        for tt in range(4):
            c = ACC + 16 * tt
            a("v_mfma_f32_32x32x16_bf16 v[%d:%d], v[%d:%d], v[%d:%d], v[%d:%d]" %
              (c, c + 15, f + 4 * tt, f + 4 * tt + 3, ff, ff + 3, c, c + 15))
    fgen(0)
    a("s_waitcnt vmcnt(%d)" % (2 * 6 + 3))
    a("s_barrier")
    reads(0)
    for g in range(28):
        i, j = g >> 2, g & 3
        if j == 3 and i < 6:
            a("s_waitcnt vmcnt(%d)" % (2 * (5 - i) + 3))
            a("s_barrier")
            reads(g + 1)
            a("s_waitcnt lgkmcnt(4)")
            mfmas(g)
            fgen(g + 1)
        elif g == 27:
            a("s_waitcnt lgkmcnt(0)")
            mfmas(g)
        else:
            reads(g + 1)
            a("s_waitcnt lgkmcnt(4)")
            mfmas(g)
            fgen(g + 1)
    for tt in range(4):
        c = ACC + 16 * tt
        o = 32 + 8 * tt
        for k in range(8):
            a("v_cvt_pk_bf16_f32 v%d, v%d, v%d" % (o + k, c + 2 * k, c + 2 * k + 1))
        a("buffer_store_dwordx4 v[%d:%d], v25, s[20:23], 0 offen offset:%d" % (o, o + 3, tt * 16))
        a("buffer_store_dwordx4 v[%d:%d], v25, s[20:23], 0 offen offset:%d" % (o + 4, o + 7, 1024 + tt * 16))
    a("s_endpgm")


def mfma(a, c, A, B):
    a("v_mfma_f32_32x32x16_bf16 v[%d:%d], v[%d:%d], v[%d:%d], v[%d:%d]" % (c, c + 15, A, A + 3, B, B + 3, c, c + 15))

def gen_k2(a):
    a.raw(kernel_header(K2))
    a("""
    s_cmp_ge_u32 s2, 253
    s_cbranch_scc1 K2_END
    s_load_dwordx2 s[4:5], s[0:1], 48
    s_load_dwordx2 s[6:7], s[0:1], 80
    v_and_b32 v1, 63, v0
    v_lshrrev_b32 v2, 6, v0
    v_readfirstlane_b32 s36, v2
    s_waitcnt lgkmcnt(0)
    """)
    srd(a, 8, 4, 1605632)
    srd(a, 20, 6, WS_SIZE)
    a("""
    s_cmp_ge_u32 s2, 224
    s_cbranch_scc1 K2_FFT
    """)
    gen_k2_down(a)
    a("K2_FFT:")
    gen_k2_fft(a)
    a("K2_END:")
    a("s_endpgm")

def tile_map_64(a):
    a("""
    s_and_b32 s72, s2, 7
    s_lshl_b32 s72, s72, 2
    s_lshr_b32 s73, s2, 3
    s_and_b32 s74, s73, 3
    s_add_u32 s74, s74, s72
    s_lshr_b32 s75, s2, 5
    """)

def tr_addr(a, dst, rowmul_h, chunk_sgpr):
    sh = {4: 2, 8: 3}[rowmul_h]
    a("""
    v_and_b32 v8, 15, v1
    v_lshrrev_b32 v9, 2, v8
    v_lshrrev_b32 v10, 5, v1
    v_lshl_add_u32 v9, v10, %d, v9
    v_lshlrev_b32 v9, 7, v9
    v_lshrrev_b32 v10, 4, v1
    v_and_b32 v10, 1, v10
    v_lshlrev_b32 v10, 1, v10
    v_lshrrev_b32 v11, 1, v8
    v_and_b32 v11, 1, v11
    v_add_u32 v10, v10, v11
    v_add_u32 v10, %s, v10
    v_lshrrev_b32 v11, 3, v8
    v_lshlrev_b32 v11, 2, v11
    v_xor_b32 v10, v10, v11
    v_lshl_add_u32 v9, v10, 4, v9
    v_and_b32 v11, 1, v8
    v_lshl_add_u32 v%d, v11, 3, v9
    """ % (sh, chunk_sgpr, dst))

def gen_k2_down(a):
    tile_map_64(a)
    a("""
    v_lshrrev_b32 v8, 3, v1
    v_mul_u32_u24 v9, 896, v8
    v_lshrrev_b32 v10, 4, v1
    v_and_b32 v10, 1, v10
    v_lshlrev_b32 v10, 2, v10
    v_and_b32 v11, 7, v1
    v_xor_b32 v10, v11, v10
    v_lshl_add_u32 v3, v10, 4, v9
    s_lshl_b32 s76, s75, 7
    s_mul_i32 s77, s36, 200704
    s_add_u32 s76, s76, s77
    v_add_u32 v3, s76, v3
    s_mul_i32 s76, s74, 224
    s_mul_i32 s77, s36, 14
    s_add_u32 s76, s76, s77
    s_lshl_b32 s76, s76, 10
    v_lshlrev_b32 v4, 4, v1
    v_add_u32 v4, s76, v4
    s_lshl_b32 s78, s36, 14
    """)
    HF = 16; AF = [128, 136]; ACC = 144
    def issue(s):
        slot = s % 8
        a("s_mov_b32 s80, %d" % (s * 14336))
        a("s_mov_b32 s81, %d" % (s * 14336 + 7168))
        a("s_mov_b32 s82, %d" % (H_OFF + s * 1024))
        a("s_mov_b32 s83, %d" % (H_OFF + s * 1024 + 114688))
        a("s_add_u32 m0, s78, %d" % (slot * 2048))
        a("buffer_load_dwordx4 v3, s[8:11], s80 offen lds")
        a("s_add_u32 m0, s78, %d" % (slot * 2048 + 1024))
        a("buffer_load_dwordx4 v3, s[8:11], s81 offen lds")
        a("buffer_load_dwordx4 v[%d:%d], v4, s[20:23], s82 offen" % (HF + 8 * s, HF + 8 * s + 3))
        a("buffer_load_dwordx4 v[%d:%d], v4, s[20:23], s83 offen" % (HF + 8 * s + 4, HF + 8 * s + 7))
    for s in range(8):
        issue(s)
    tr_addr(a, 5, 4, "0")
    a("v_add_u32 v5, s78, v5")
    a("v_xor_b32 v6, 64, v5")
    for r in range(64):
        a("v_mov_b32 v%d, 0" % (ACC + r))
    issued = [8]
    def wait_step(k):
        a("s_waitcnt vmcnt(%d)" % (4 * (issued[0] - k - 1)))
    def reads(s):
        f = AF[s & 1]; slot = s % 8
        for dtl in range(2):
            for rd in range(2):
                a("ds_read_b64_tr_b16 v[%d:%d], v%d offset:%d" % (f + 4 * dtl + 2 * rd, f + 4 * dtl + 2 * rd + 1, 5 + dtl,
                                                               slot * 2048 + rd * 1024))
    wait_step(0); reads(0)
    for s in range(14):
        if s + 1 < 14:
            wait_step(s + 1); reads(s + 1)
            a("s_waitcnt lgkmcnt(4)")
        else:
            a("s_waitcnt lgkmcnt(0)")
        if s + 8 < 14:
            issue(s + 8); issued[0] += 1
        f = AF[s & 1]
        for dtl in range(2):
            for tt in range(2):
                mfma(a, ACC + 16 * (2 * dtl + tt), f + 4 * dtl, HF + 8 * s + 4 * tt)
    a("""
    v_lshlrev_b32 v7, 4, v1
    v_add_u32 v8, s78, v7
    s_lshl_b32 s79, s36, 11
    v_add_u32 v9, s79, v7
    v_add_u32 v10, 65536, v9
    """)
    for p in range(8):
        for q in range(2):
            c = ACC + 8 * p + 4 * q
            a("ds_write_b128 v8, v[%d:%d] offset:%d" % (c, c + 3, p * 2048 + q * 1024))
    a("s_waitcnt lgkmcnt(0)")
    a("s_barrier")
    for w2 in range(8):
        for q in range(2):
            d = 16 + 8 * w2 + 4 * q
            a("ds_read_b128 v[%d:%d], v%d offset:%d" % (d, d + 3, 9 if w2 < 4 else 10, (w2 & 3) * 16384 + q * 1024))
    a("""
    s_lshr_b32 s80, s36, 1
    s_and_b32 s81, s80, 1
    s_lshr_b32 s80, s80, 1
    s_lshl_b32 s82, s74, 1
    s_add_u32 s82, s82, s81
    s_mul_i32 s82, s82, 14
    s_lshl_b32 s83, s75, 1
    s_add_u32 s82, s82, s83
    s_add_u32 s82, s82, s80
    s_lshl_b32 s82, s82, 1
    s_and_b32 s83, s36, 1
    s_add_u32 s82, s82, s83
    s_lshl_b32 s82, s82, 10
    s_add_u32 s82, s82, 0x%x
    """ % BQ_OFF)
    for w2 in range(1, 8):
        a("s_waitcnt lgkmcnt(%d)" % (2 * (7 - w2)))
        for k in range(8):
            a("v_add_f32 v%d, v%d, v%d" % (16 + k, 16 + k, 16 + 8 * w2 + k))
    for k in range(4):
        a("v_cvt_pk_bf16_f32 v%d, v%d, v%d" % (80 + k, 16 + 2 * k, 17 + 2 * k))
    a("buffer_store_dwordx4 v[80:83], v7, s[20:23], s82 offen")
    a("s_endpgm")

def gen_k2_fft(a):
    a("""
    s_sub_u32 s72, s2, 224
    s_lshl_b32 s72, s72, 3
    s_add_u32 s72, s72, s36
    s_cmp_ge_u32 s72, 225
    s_cbranch_scc1 K2_END
    s_lshl_b32 s73, s72, 13
    s_add_u32 s74, s73, 0x%x
    s_add_u32 s75, s74, 4096
    s_add_u32 s76, s73, 0x%x
    v_lshlrev_b32 v2, 4, v1
    v_and_b32 v3, 31, v1
    v_lshrrev_b32 v4, 5, v1
    v_lshlrev_b32 v5, 8, v3
    v_lshl_add_u32 v5, v4, 4, v5
    """ % (PF_OFF, WT_OFF))
    CR, CI, NCI = 16, 24, 32
    ER, EI = 40, 72
    WV = 104
    ACC = 136
    FA, FB, FC = 200, 216, 232
    PR, PI = 200, 216
    for c, base, so in ((0, PR, "s74"), (1, PI, "s75")):
        for T in range(2):
            for j in range(2):
                d = base + 4 * (2 * T + j)
                a("buffer_load_dwordx4 v[%d:%d], v2, s[20:23], %s offen offset:%d" % (d, d + 3, so, T * 2048 + j * 1024))
    for U in range(2):
        for q in range(4):
            d = WV + 4 * (4 * U + q)
            a("buffer_load_dwordx4 v[%d:%d], v5, s[20:23], s76 offen offset:%d" % (d, d + 3, U * 128 + q * 32))
    a("""
    v_cvt_f32_u32 v6, v3
    v_lshlrev_b32 v7, 2, v4
    v_cvt_f32_u32 v7, v7
    """)
    T0 = 248
    def kc(i):
        return 8 * (i >> 2) + (i & 3)
    def gen_frag(theta, phi, kbase, dcos, dsin_neg, dsin_pos=None):
        t = ACC
        for i in range(8):
            a("v_fmamk_f32 v%d, v%d, %s, v%d" % (t + i, theta, fl(float(kbase + kc(i))), phi))
        for i in range(8):
            a("v_sin_f32 v%d, v%d" % (t + 8 + i, t + i))
        for i in range(8):
            a("v_cos_f32 v%d, v%d" % (t + i, t + i))
        for i in range(4):
            a("v_cvt_pk_bf16_f32 v%d, v%d, v%d" % (dcos + i, t + 2 * i, t + 2 * i + 1))
            a("v_cvt_pk_bf16_f32 v%d, -v%d, -v%d" % (dsin_neg + i, t + 8 + 2 * i, t + 9 + 2 * i))
            if dsin_pos is not None:
                a("v_cvt_pk_bf16_f32 v%d, v%d, v%d" % (dsin_pos + i, t + 8 + 2 * i, t + 9 + 2 * i))
    a("v_mul_f32 v8, %s, v6" % fl(1.0 / 32))
    a("v_mul_f32 v9, v7, v8")
    for j in range(2):
        gen_frag(8, 9, 16 * j, CR + 4 * j, CI + 4 * j, NCI + 4 * j)
    for U in range(2):
        a("v_add_f32 v8, %s, v6" % fl(32.0 * U))
        a("v_mul_f32 v8, %s, v8" % fl(1.0 / 64))
        a("v_mul_f32 v9, v7, v8")
        for jj in range(4):
            gen_frag(8, 9, 16 * jj, ER + 4 * (4 * U + jj), EI + 4 * (4 * U + jj))
    def zero_acc():
        for r in range(64):
            a("v_mov_b32 v%d, 0" % (ACC + r))
    RE = [ACC, ACC + 16]; IM = [ACC + 32, ACC + 48]
    def rowc(r):
        return (r & 3) + 8 * (r >> 2)
    zero_acc()
    a("s_waitcnt vmcnt(8)")
    for T in range(2):
        for j in range(2):
            mfma(a, RE[T], PR + 4 * (2 * T + j), CR + 4 * j)
            mfma(a, IM[T], PR + 4 * (2 * T + j), CI + 4 * j)
        for j in range(2):
            mfma(a, RE[T], PI + 4 * (2 * T + j), NCI + 4 * j)
            mfma(a, IM[T], PI + 4 * (2 * T + j), CR + 4 * j)
    a("v_mul_f32 v8, %s, v6" % fl(1.0 / 2048))
    a("v_mul_f32 v9, v7, v8")
    def twiddle(theta, phi, kfun, sign):
        for T in range(2):
            th, ph = theta(T), phi(T)
            for r0 in range(0, 16, 4):
                for k in range(4):
                    a("v_fmamk_f32 v%d, v%d, %s, v%d" % (T0 + k, th, fl(float(kfun(T, r0 + k))), ph))
                for k in range(4):
                    a("v_sin_f32 v%d, v%d" % (T0 + 4 + k, T0 + k))
                for k in range(4):
                    a("v_cos_f32 v%d, v%d" % (T0 + k, T0 + k))
                for k in range(4):
                    xr, xi = RE[T] + r0 + k, IM[T] + r0 + k
                    c, s = T0 + k, T0 + 4 + k
                    a("v_mul_f32 v10, v%d, v%d" % (xr, s))
                    a("v_mul_f32 v11, v%d, v%d" % (xi, s))
                    if sign < 0:
                        a("v_fma_f32 v%d, v%d, v%d, v11" % (xr, xr, c))
                        a("v_fma_f32 v%d, v%d, v%d, -v10" % (xi, xi, c))
                    else:
                        a("v_fma_f32 v%d, v%d, v%d, -v11" % (xr, xr, c))
                        a("v_fma_f32 v%d, v%d, v%d, v10" % (xi, xi, c))
    def pack(dst, src_tiles, neg=False):
        n = "-" if neg else ""
        for T in range(2):
            for k in range(8):
                a("v_cvt_pk_bf16_f32 v%d, %sv%d, %sv%d" % (dst + 8 * T + k, n, src_tiles[T] + 2 * k, n, src_tiles[T] + 2 * k + 1))
    twiddle(lambda T: 8, lambda T: 9, lambda T, r: 32 * T + rowc(r), -1)
    pack(FA, RE); pack(FB, IM); pack(FC, IM, neg=True)
    zero_acc()
    for U in range(2):
        for jj in range(4):
            e = 4 * (4 * U + jj)
            mfma(a, RE[U], ER + e, FA + 4 * jj)
            mfma(a, IM[U], EI + e, FA + 4 * jj)
        for jj in range(4):
            e = 4 * (4 * U + jj)
            mfma(a, RE[U], EI + e, FC + 4 * jj)
            mfma(a, IM[U], ER + e, FB + 4 * jj)
    a("s_waitcnt vmcnt(0)")
    for U in range(2):
        for r in range(16):
            w = WV + 16 * U + r
            xr, xi = RE[U] + r, IM[U] + r
            a("v_lshlrev_b32 v10, 16, v%d" % w)
            a("v_and_b32 v11, 0xffff0000, v%d" % w)
            a("v_mul_f32 v12, v%d, v11" % xr)
            a("v_mul_f32 v13, v%d, v11" % xi)
            a("v_fma_f32 v%d, v%d, v10, -v13" % (xr, xr))
            a("v_fma_f32 v%d, v%d, v10, v12" % (xi, xi))
    pack(FA, RE); pack(FB, IM); pack(FC, RE, neg=True)
    zero_acc()
    for V in range(2):
        for jj in range(4):
            e = 4 * (4 * V + jj)
            mfma(a, RE[V], FA + 4 * jj, ER + e)
            mfma(a, IM[V], FB + 4 * jj, ER + e)
        for jj in range(4):
            e = 4 * (4 * V + jj)
            mfma(a, RE[V], FB + 4 * jj, EI + e)
            mfma(a, IM[V], FC + 4 * jj, EI + e)
    a("v_mul_f32 v8, %s, v6" % fl(1.0 / 2048))
    a("v_mul_f32 v9, v7, v8")
    a("v_add_f32 v14, %s, v8" % fl(32.0 / 2048))
    a("v_mul_f32 v15, v7, v14")
    twiddle(lambda V: 8 if V == 0 else 14, lambda V: 9 if V == 0 else 15, lambda V, r: rowc(r), +1)
    pack(FA, RE); pack(FB, IM)
    zero_acc()
    for V in range(2):
        for j in range(2):
            mfma(a, RE[V], CR + 4 * j, FA + 4 * (2 * V + j))
            mfma(a, IM[V], CR + 4 * j, FB + 4 * (2 * V + j))
        for j in range(2):
            mfma(a, RE[V], CI + 4 * j, FB + 4 * (2 * V + j))
            mfma(a, IM[V], NCI + 4 * j, FA + 4 * (2 * V + j))
    a("""
    v_lshlrev_b32 v8, 6, v3
    v_lshl_add_u32 v8, v4, 5, v8
    s_lshl_b32 s77, s72, 12
    s_add_u32 s77, s77, 0x%x
    s_add_u32 s78, s77, %d
    """ % (ZT_OFF, 225 * 4096))
    o = 16
    for c, tiles, so in ((0, RE, "s77"), (1, IM, "s78")):
        for V in range(2):
            t = tiles[V]
            pos = {0: 0, 2: 2, 1: 4, 3: 6}
            for q in range(4):
                a("v_cvt_pk_bf16_f32 v%d, v%d, v%d" % (o + pos[q], t + 4 * q, t + 4 * q + 1))
                a("v_cvt_pk_bf16_f32 v%d, v%d, v%d" % (o + pos[q] + 1, t + 4 * q + 2, t + 4 * q + 3))
            for x, y in ((0, 2), (1, 3), (4, 6), (5, 7)):
                a("v_permlane32_swap_b32 v%d, v%d" % (o + x, o + y))
            a("buffer_store_dwordx4 v[%d:%d], v8, s[20:23], %s offen offset:%d" % (o, o + 3, so, V * 2048))
            a("buffer_store_dwordx4 v[%d:%d], v8, s[20:23], %s offen offset:%d" % (o + 4, o + 7, so, V * 2048 + 16))
            o += 8
    a("s_endpgm")

def gen_k3(a):
    a.raw(kernel_header(K3))
    a("""
    s_cmp_ge_u32 s2, 224
    s_cbranch_scc1 K3_END
    s_load_dwordx2 s[4:5], s[0:1], 64
    s_load_dwordx2 s[6:7], s[0:1], 80
    v_and_b32 v1, 63, v0
    v_lshrrev_b32 v2, 6, v0
    v_readfirstlane_b32 s36, v2
    s_waitcnt lgkmcnt(0)
    """)
    srd(a, 8, 4, 1835008)
    srd(a, 20, 6, WS_SIZE)
    tile_map_64(a)
    a("""
    s_and_b32 s76, s36, 1
    s_lshr_b32 s77, s36, 1
    s_mul_i32 s78, s76, 120
    v_lshrrev_b32 v8, 3, v1
    v_add_u32 v8, s78, v8
    v_lshrrev_b32 v10, 4, v1
    v_and_b32 v10, 1, v10
    v_lshlrev_b32 v10, 2, v10
    v_and_b32 v11, 7, v1
    v_xor_b32 v10, v11, v10
    v_lshlrev_b32 v10, 4, v10
    s_mul_i32 s79, s77, %d
    s_lshl_b32 s80, s74, 7
    s_add_u32 s79, s79, s80
    s_add_u32 s79, s79, 0x%x
    s_mul_i32 s81, s36, 15360
    v_mov_b32 v12, 224
    """ % (225 * 4096, ZT_OFF))
    for b in range(15):
        a("v_add_u32 v9, %d, v8" % (8 * b))
        a("v_min_u32 v9, v9, v12")
        a("v_lshl_add_u32 v%d, v9, 12, v10" % (13 + (b & 1)))
        a("s_add_u32 m0, s81, %d" % (b * 1024))
        a("buffer_load_dwordx4 v%d, s[20:23], s79 offen lds" % (13 + (b & 1)))
    GFR = 32
    a("""
    s_lshl_b32 s82, s75, 1
    s_add_u32 s82, s82, s76
    s_mul_i32 s83, s82, 30720
    s_add_u32 s83, s83, 0x%x
    v_lshlrev_b32 v7, 4, v1
    s_lshl_b32 s84, s74, 1
    s_add_u32 s84, s84, s77
    """ % GF_OFF)
    for kk in range(30):
        if kk % 4 == 0 and kk > 0:
            a("s_add_u32 s83, s83, 4096")
        a("buffer_load_dwordx4 v[%d:%d], v7, s[20:23], s83 offen offset:%d" % (GFR + 4 * kk, GFR + 4 * kk + 3, (kk % 4) * 1024))
    a("""
    s_mul_i32 s85, s84, 14
    s_add_u32 s85, s85, s82
    s_lshl_b32 s85, s85, 11
    s_add_u32 s85, s85, 0x%x
    buffer_load_dwordx4 v[152:155], v7, s[20:23], s85 offen
    buffer_load_dwordx4 v[156:159], v7, s[20:23], s85 offen offset:1024
    v_and_b32 v3, 31, v1
    v_lshrrev_b32 v4, 5, v1
    v_lshlrev_b32 v5, 2, v3
    s_lshl_b32 s86, s84, 7
    s_add_u32 s86, s86, 0x%x
    buffer_load_dword v160, v5, s[20:23], s86 offen
    s_lshl_b32 s87, s77, 2
    """ % (BQ_OFF, GATE_OFF))
    tr_addr(a, 6, 8, "s87")
    ACC = 16
    for r in range(16):
        a("v_mov_b32 v%d, 0" % (ACC + r))
    a("s_waitcnt vmcnt(33)")
    a("s_barrier")
    ZF = [164, 168, 172]
    def reads(kk):
        f = ZF[kk % 3]
        for rd in range(2):
            a("ds_read_b64_tr_b16 v[%d:%d], v6 offset:%d" % (f + 2 * rd, f + 2 * rd + 1, (16 * kk + 4 * rd) * 128))
    reads(0); reads(1)
    for kk in range(30):
        if kk + 2 < 30:
            reads(kk + 2)
        lg = 2 * min(2, 29 - kk)
        a("s_waitcnt vmcnt(%d) lgkmcnt(%d)" % (32 - kk, lg))
        mfma(a, ACC, GFR + 4 * kk, ZF[kk % 3])
    a("""
    s_waitcnt vmcnt(0)
    v_sub_f32 v161, 1.0, v160
    v_mul_f32 v160, %s, v160
    v_mul_u32_u24 v8, 57344, v3
    v_lshl_add_u32 v8, v4, 5, v8
    s_mul_i32 s88, s84, 896
    s_lshl_b32 s89, s82, 6
    s_add_u32 s88, s88, s89
    """ % fl(1.0 / (2048.0 * 448.0)))
    for r in range(16):
        w = 152 + r // 2
        if r % 2 == 0:
            a("v_lshlrev_b32 v%d, 16, v%d" % (176 + r, w))
        else:
            a("v_and_b32 v%d, 0xffff0000, v%d" % (176 + r, w))
        a("v_mul_f32 v%d, v%d, v161" % (176 + r, 176 + r))
    for r in range(16):
        a("v_fma_f32 v%d, v%d, v160, v%d" % (176 + r, ACC + r, 176 + r))
    o = 192
    pos = {0: 0, 2: 2, 1: 4, 3: 6}
    for q in range(4):
        a("v_cvt_pk_bf16_f32 v%d, v%d, v%d" % (o + pos[q], 176 + 4 * q, 177 + 4 * q))
        a("v_cvt_pk_bf16_f32 v%d, v%d, v%d" % (o + pos[q] + 1, 178 + 4 * q, 179 + 4 * q))
    for x, y in ((0, 2), (1, 3), (4, 6), (5, 7)):
        a("v_permlane32_swap_b32 v%d, v%d" % (o + x, o + y))
    a("buffer_store_dwordx4 v[%d:%d], v8, s[8:11], s88 offen" % (o, o + 3))
    a("buffer_store_dwordx4 v[%d:%d], v8, s[8:11], s88 offen offset:16" % (o + 4, o + 7))
    a("K3_END:")
    a("s_endpgm")

def main(out):
    a = Asm()
    hdr = open("gated_mix__spectral_gfnet__glu_gated_geglu__prompt.s.ref").read().split("\n")
    for l in hdr:
        if l.startswith(";") and "@launch" not in l and "Override" not in l and "grid=ceil" not in l:
            a.raw(l)
    a.raw("; @launch kernel=%s grid=(256,1,1) block=(512,1,1) lds=147456" % K1)
    a.raw("; @launch kernel=%s grid=(253,1,1) block=(512,1,1) lds=131072" % K2)
    a.raw("; @launch kernel=%s grid=(224,1,1) block=(256,1,1) lds=61440" % K3)
    a.raw('.amdgcn_target "amdgcn-amd-amdhsa--gfx950"\n.text')
    gen_k1(a)
    gen_k2(a)
    gen_k3(a)
    a.raw('.section .rodata,"a"')
    a.raw(kernel_desc(K1, 224, 96))
    a.raw(kernel_desc(K2, 256, 96))
    a.raw(kernel_desc(K3, 200, 96))
    open(out, "w").write(a.finalize())
    print("nops inserted", a.nops_inserted)

if __name__ == "__main__":
    main(sys.argv[1] if len(sys.argv) > 1 else "k.s")
```

```python
import sys, struct, math
sys.path.insert(0, "tools")
from asmgen import *

def f2u(x):
    return struct.unpack("<I", struct.pack("<f", x))[0]
def fl(x):
    return "0x%08x" % f2u(x)

H_OFF    = 0x0000000
PF_OFF   = 0x0700000
WT_OFF   = 0x0900000
GATE_OFF = 0x0B00000
GF_OFF   = 0x0B10000
TB_OFF   = 0x0B80000
CNT_OFF  = 0x0B90000
ZT_OFF   = 0x0C00000
BQ_OFF   = 0x0E00000
WS_SIZE  = 0x1100000

K1 = "k1_gateup_dft_kernel"
K2 = "k2_down_fft_kernel"
K3 = "k3_idft_mix_kernel"

LOG2E = 1.4426950408889634

STAMP = False
import os
EXP = os.environ.get("EXP", "")
HST = " sc0 sc1"
STAMP_OFF = 0x1000000
def stamp(a, i):
    if not STAMP: return
    a("s_memrealtime s[98:99]")
    a("s_waitcnt lgkmcnt(0)")
    a("s_mov_b32 s%d, s98" % (90 + i))
    if i in (4, 5) and "clk" in EXP:
        a("s_memtime s[98:99]")
        a("s_waitcnt lgkmcnt(0)")
        a("s_mov_b32 s%d, s98" % (96 + i))
def stamp_flush(a, k, n):
    if not STAMP: return
    a("s_waitcnt vmcnt(0)")
    stamp(a, n)
    a("v_mov_b32 v2, 0")
    for i in range(n + 1):
        a("v_writelane_b32 v2, s%d, %d" % (90 + i, i))
    if "clk" in EXP and k == 0:
        a("v_writelane_b32 v2, s100, 8")
        a("v_writelane_b32 v2, s101, 9")
    a("s_lshl_b32 s98, s2, 3")
    a("s_add_u32 s98, s98, s36")
    a("s_lshl_b32 s98, s98, 6")
    a("s_add_u32 s98, s98, 0x%x" % (STAMP_OFF + k * 0x20000))
    a("v_lshlrev_b32 v3, 2, v1")
    a("s_mov_b64 exec, 0xffff")
    a("buffer_store_dword v2, v3, s[20:23], s98 offen")

def srd(a, base, ptr, nbytes):
    a("s_mov_b32 s%d, s%d" % (base, ptr))
    a("s_mov_b32 s%d, s%d" % (base + 1, ptr + 1))
    a("s_mov_b32 s%d, %d" % (base + 2, nbytes))
    a("s_mov_b32 s%d, 0x00020000" % (base + 3))

sX, sWg, sWu, sWS, sWr, sWi, sGw = 8, 12, 16, 20, 24, 28, 32
sWave = 36

def k1_side_loads(a):
    a("""
    s_and_b32 s40, s2, 31
    s_lshr_b32 s41, s2, 5
    s_lshl_b32 s41, s41, 3
    v_and_b32 v116, 255, v0
    v_lshrrev_b32 v117, 8, v0
    v_lshlrev_b32 v117, 2, v117
    v_add_u32 v117, s41, v117
    v_lshlrev_b32 v118, 5, v117
    v_add_u32 v118, s40, v118
    v_mul_u32_u24 v118, 450, v118
    v_lshl_add_u32 v118, v116, 1, v118
    s_mov_b32 s42, 14400
    s_mov_b32 s43, 28800
    s_mov_b32 s44, 43200
    buffer_load_ushort v100, v118, s[24:27], 0 offen
    buffer_load_ushort v101, v118, s[24:27], s42 offen
    buffer_load_ushort v102, v118, s[24:27], s43 offen
    buffer_load_ushort v103, v118, s[24:27], s44 offen
    buffer_load_ushort v104, v118, s[28:31], 0 offen
    buffer_load_ushort v105, v118, s[28:31], s42 offen
    buffer_load_ushort v106, v118, s[28:31], s43 offen
    buffer_load_ushort v107, v118, s[28:31], s44 offen
    """)
    a("""
    v_lshlrev_b32 v118, 5, v116
    v_add_u32 v118, s40, v118
    v_lshl_add_u32 v118, v118, 6, v117
    v_lshlrev_b32 v118, 2, v118
    v_add_u32 v118, 0x%x, v118
    """ % WT_OFF)
    a("""
    s_lshl_b32 s45, s2, 3
    s_add_u32 s45, s45, s36
    s_mul_i32 s46, s45, 896
    v_lshlrev_b32 v119, 4, v1
    v_add_u32 v120, s46, v119
    v_mov_b32 v121, 0x7ffffff0
    v_cmp_gt_u32 vcc, 56, v1
    v_cndmask_b32 v120, v121, v120, vcc
    buffer_load_dwordx4 v[108:111], v120, s[8:11], 0 offen
    buffer_load_dwordx4 v[112:115], v119, s[32:35], 0 offen
    """)

_uid = [0]
def k1_gf_compute(a):
    _uid[0] += 1
    L = "TJ%d" % _uid[0]
    a("""
    v_and_b32 v129, 31, v1
    v_lshrrev_b32 v130, 5, v1
    s_cmp_ge_u32 s45, 448
    s_cbranch_scc1 %s_T
    s_lshr_b32 s47, s45, 5
    s_lshl_b32 s47, s47, 5
    s_and_b32 s48, s45, 31
    s_cmp_ge_u32 s48, 16
    s_cselect_b32 s50, 0x3e800000, 0
    s_cselect_b32 s51, 0, 1.0
    s_and_b32 s49, s48, 15
    s_lshl_b32 s49, s49, 4
    v_add_u32 v129, s47, v129
    v_cvt_f32_u32 v129, v129
    v_mul_f32 v129, %s, v129
    v_lshlrev_b32 v130, 3, v130
    v_add_u32 v130, s49, v130
    v_cvt_f32_u32 v130, v130
    v_mov_b32 v131, s50
    v_mov_b32 v132, s51
    v_mov_b32 v133, 2.0
    v_mov_b32 v134, 0
    v_mov_b32 v135, %s
    """ % (L, fl(1.0 / 448.0), fl(224.0)))
    for i in range(8):
        t = 136 + i
        a("v_add_f32 v144, %s, v130" % fl(float(i)))
        a("v_fma_f32 v%d, v144, v129, v131" % t)
        a("v_cos_f32 v%d, v%d" % (t, t))
        a("v_cmp_lt_f32 vcc, v135, v144")
        a("v_cndmask_b32 v145, v133, v134, vcc")
        a("v_cmp_eq_f32 vcc, v135, v144")
        a("v_cndmask_b32 v145, v145, v132, vcc")
        a("v_cmp_eq_f32 vcc, 0, v144")
        a("v_cndmask_b32 v145, v145, v132, vcc")
        a("v_mul_f32 v%d, v%d, v145" % (t, t))
    for i in range(4):
        a("v_cvt_pk_bf16_f32 v%d, v%d, v%d" % (124 + i, 136 + 2 * i, 137 + 2 * i))
    a("s_branch %s_E" % L)
    a("%s_T:" % L)
    a("""
    s_sub_u32 s48, s45, 448
    s_cmp_ge_u32 s48, 22
    s_cbranch_scc1 %s_W
    s_cmp_ge_u32 s48, 6
    s_cbranch_scc1 %s_X
    s_mov_b32 s52, %s
    s_mov_b32 s47, 0
    s_and_b32 s49, s48, 1
    s_lshl_b32 s49, s49, 4
    s_lshr_b32 s50, s48, 1
    s_cmp_eq_u32 s50, 1
    s_cselect_b32 s51, 0x3e800000, 0
    s_cmp_eq_u32 s50, 2
    s_cselect_b32 s50, 0xbe800000, s51
    s_branch %s_C
    %s_X:
    s_sub_u32 s48, s48, 6
    s_mov_b32 s52, %s
    s_lshr_b32 s47, s48, 2
    s_and_b32 s47, s47, 1
    s_lshl_b32 s47, s47, 5
    s_and_b32 s49, s48, 3
    s_lshl_b32 s49, s49, 4
    s_cmp_ge_u32 s48, 8
    s_cselect_b32 s50, 0x3e800000, 0
    s_branch %s_C
    %s_W:
    s_sub_u32 s48, s48, 22
    s_mov_b32 s52, %s
    s_lshr_b32 s47, s48, 3
    s_and_b32 s47, s47, 1
    s_lshl_b32 s47, s47, 5
    s_lshr_b32 s49, s48, 1
    s_and_b32 s49, s49, 3
    s_lshl_b32 s49, s49, 3
    s_and_b32 s50, s48, 1
    s_cmp_eq_u32 s50, 1
    s_cselect_b32 s50, 0xbe800000, 0
    s_cmp_ge_u32 s48, 16
    s_cbranch_scc1 %s_C
    s_add_u32 s49, s49, s47
    s_mov_b32 s47, 0
    %s_C:
    v_add_u32 v129, s47, v129
    v_cvt_f32_u32 v129, v129
    v_mul_f32 v129, s52, v129
    v_lshlrev_b32 v130, 2, v130
    v_add_u32 v130, s49, v130
    v_cvt_f32_u32 v130, v130
    v_mov_b32 v131, s50
    """ % (L, L, fl(1.0 / 32), L, L, fl(1.0 / 64), L, L, fl(1.0 / 2048), L, L))
    for i in range(8):
        t = 136 + i
        a("v_add_f32 v144, %s, v130" % fl(float(8 * (i >> 2) + (i & 3))))
        a("v_fma_f32 v%d, v144, v129, v131" % t)
        a("v_cos_f32 v%d, v%d" % (t, t))
    for i in range(4):
        a("v_cvt_pk_bf16_f32 v%d, v%d, v%d" % (124 + i, 136 + 2 * i, 137 + 2 * i))
    a("s_cmp_lt_u32 s45, 470")
    a("s_cbranch_scc1 %s_E" % L)
    for i in range(4):
        a("v_mov_b32 v%d, v%d" % (124 + i, 136 + i))
    a("s_cmp_lt_u32 s45, 512")
    a("s_cbranch_scc1 %s_E" % L)
    a("v_lshlrev_b32 v144, 2, v1")
    for i in range(4):
        a("v_add_u32 v145, %d, v144" % i)
        a("v_cmp_lt_u32 vcc, 224, v145")
        a("v_cndmask_b32 v%d, 0, 1, vcc" % (124 + i))
    a("%s_E:" % L)
    a("""
    s_lshl_b32 s53, s45, 10
    s_add_u32 s53, s53, 0x%x
    s_cmp_lt_u32 s45, 513
    s_cselect_b32 s53, s53, 0x7ffffff0
    v_lshlrev_b32 v128, 4, v1
    v_add_u32 v128, s53, v128
    """ % GF_OFF)

def k1_side_compute_store(a):
    for q in range(4):
        a("v_lshl_or_b32 v%d, v%d, 16, v%d" % (100 + q, 104 + q, 100 + q))
    a("v_mov_b32 v136, 0")
    for q in range(4):
        a("v_lshlrev_b32 v137, 16, v%d" % (108 + q))
        a("v_lshlrev_b32 v138, 16, v%d" % (112 + q))
        a("v_fmac_f32 v136, v137, v138")
        a("v_and_b32 v137, 0xffff0000, v%d" % (108 + q))
        a("v_and_b32 v138, 0xffff0000, v%d" % (112 + q))
        a("v_fmac_f32 v136, v137, v138")
    for sh in (1, 2, 4, 8):
        a("v_add_f32_dpp v136, v136, v136 row_shr:%d row_mask:0xf bank_mask:0xf bound_ctrl:0" % sh)
    a("""
    v_readlane_b32 s54, v136, 15
    v_readlane_b32 s55, v136, 31
    v_readlane_b32 s56, v136, 47
    v_readlane_b32 s57, v136, 63
    v_mov_b32 v136, s54
    v_add_f32 v136, s55, v136
    v_add_f32 v136, s56, v136
    v_add_f32 v136, s57, v136
    v_mul_f32 v136, %s, v136
    v_exp_f32 v136, v136
    v_add_f32 v136, 1.0, v136
    v_rcp_f32 v136, v136
    s_and_b32 s54, s45, 63
    s_lshl_b32 s54, s54, 5
    s_lshr_b32 s55, s45, 6
    s_add_u32 s54, s54, s55
    s_lshl_b32 s54, s54, 2
    s_add_u32 s54, s54, 0x%x
    v_mov_b32 v137, s54
    buffer_store_dwordx4 v[124:127], v128, s[20:23], 0 offen sc0 sc1
    v_cmp_gt_u32 vcc, 225, v116
    s_and_saveexec_b64 s[58:59], vcc
    buffer_store_dwordx4 v[100:103], v118, s[20:23], 0 offen sc0 sc1
    s_mov_b64 exec, 1
    buffer_store_dword v136, v137, s[20:23], 0 offen
    s_mov_b64 exec, s[58:59]
    """ % (fl(-LOG2E), GATE_OFF))

def k1_prefetch_wd(a):
    a("""
    s_lshr_b32 s86, s2, 3
    s_lshl_b32 s86, s86, 3
    s_add_u32 s86, s86, s36
    s_mul_i32 s86, s86, 6272
    v_lshlrev_b32 v146, 7, v1
    buffer_load_dword v147, v146, s[64:67], s86 offen
    """)

def gen_k1(a):
    a.raw(kernel_header(K1))
    a("""
    s_cmp_ge_u32 s2, 256
    s_cbranch_scc1 K1_END
    s_load_dwordx2 s[4:5], s[0:1], 0
    s_load_dwordx4 s[60:63], s[0:1], 8
    s_load_dwordx4 s[64:67], s[0:1], 32
    s_load_dwordx2 s[68:69], s[0:1], 56
    s_load_dwordx2 s[70:71], s[0:1], 80
    s_load_dwordx2 s[6:7], s[0:1], 48
    v_and_b32 v1, 63, v0
    v_lshrrev_b32 v2, 6, v0
    v_readfirstlane_b32 s36, v2
    s_waitcnt lgkmcnt(0)
    """)
    srd(a, sX, 4, 1835008)
    srd(a, sWr, 60, 921600)
    srd(a, sWi, 62, 921600)
    srd(a, sWg, 64, 1605632)
    srd(a, sWu, 66, 1605632)
    srd(a, sGw, 68, 896)
    srd(a, sWS, 70, WS_SIZE)
    srd(a, 64, 6, 1605632)
    stamp(a, 0)
    a("""
    s_cmp_ge_u32 s2, 224
    s_cbranch_scc1 K1_DFT
    """)
    gen_k1_gateup(a)
    a("K1_DFT:")
    gen_k1_dft(a)
    a("K1_END:")
    a("s_endpgm")

def gen_k1_gateup(a):
    a("""
    s_and_b32 s72, s2, 7
    s_lshr_b32 s73, s2, 3
    s_and_b32 s74, s72, 1
    s_lshl_b32 s74, s74, 2
    s_and_b32 s75, s73, 3
    s_add_u32 s74, s74, s75
    s_lshr_b32 s75, s72, 1
    s_mul_i32 s75, s75, 7
    s_lshr_b32 s76, s73, 2
    s_add_u32 s75, s75, s76
    """)
    a("""
    s_lshl_b32 s76, s74, 3
    s_add_u32 s76, s76, s36
    s_mul_i32 s76, s76, 896
    v_lshrrev_b32 v8, 3, v1
    v_mul_u32_u24 v9, 57344, v8
    v_add_u32 v9, s76, v9
    v_lshrrev_b32 v10, 4, v1
    v_and_b32 v11, 7, v1
    v_xor_b32 v12, v11, v10
    v_xor_b32 v13, 4, v12
    v_lshl_add_u32 v4, v12, 4, v9
    v_lshl_add_u32 v5, v13, 4, v9
    v_add_u32 v5, 458752, v5
    v_add_u32 v6, 917504, v4
    v_add_u32 v7, 917504, v5
    """)
    a("""
    s_lshl_b32 s77, s36, 3
    v_add_u32 v9, s77, v8
    v_mul_u32_u24 v9, 3584, v9
    v_and_b32 v10, 1, v10
    v_lshlrev_b32 v10, 2, v10
    v_xor_b32 v10, v11, v10
    v_lshl_add_u32 v3, v10, 4, v9
    s_lshl_b32 s77, s75, 7
    v_add_u32 v3, s77, v3
    s_lshl_b32 s78, s36, 12
    s_lshl_b32 s79, s36, 10
    """)
    def issue_part(ks, part):
        sb = (ks % 3) * 49152
        if part < 2:
            a("s_mov_b32 s80, %d" % (ks * 128))
            for q in (2 * part, 2 * part + 1):
                a("s_add_u32 m0, s78, %d" % (sb + q * 1024))
                a("buffer_load_dwordx4 v%d, s[8:11], s80 offen lds" % (4 + q))
        else:
            a("s_mov_b32 s81, %d" % (ks * 229376))
            a("s_add_u32 m0, s79, %d" % (sb + 32768))
            a("buffer_load_dwordx4 v3, s[12:15], s81 offen lds")
            a("s_add_u32 m0, s79, %d" % (sb + 40960))
            a("buffer_load_dwordx4 v3, s[16:19], s81 offen lds")
    for part in (2, 0, 1):
        issue_part(0, part)
    k1_side_loads(a)
    a("""
    s_lshr_b32 s82, s36, 1
    s_and_b32 s83, s36, 1
    s_lshl_b32 s84, s82, 13
    v_and_b32 v8, 31, v1
    v_lshlrev_b32 v8, 7, v8
    v_add_u32 v8, s84, v8
    v_lshrrev_b32 v9, 5, v1
    v_lshrrev_b32 v10, 1, v1
    v_and_b32 v10, 7, v10
    """)
    for j in range(4):
        a("v_add_u32 v11, %d, v9" % (2 * j))
        a("v_xor_b32 v11, v11, v10")
        a("v_lshl_add_u32 v%d, v11, 4, v8" % (14 + j))
        a("v_add_u32 v%d, 49152, v%d" % (18 + j, 14 + j))
        a("v_add_u32 v%d, 98304, v%d" % (22 + j, 14 + j))
    a("""
    v_and_b32 v8, 15, v1
    v_lshrrev_b32 v9, 2, v8
    v_lshrrev_b32 v10, 5, v1
    v_lshl_add_u32 v9, v10, 3, v9
    v_lshlrev_b32 v9, 7, v9
    v_lshrrev_b32 v10, 4, v1
    v_and_b32 v10, 1, v10
    v_lshlrev_b32 v10, 1, v10
    v_lshrrev_b32 v11, 1, v8
    v_and_b32 v11, 1, v11
    v_add_u32 v10, v10, v11
    s_lshl_b32 s84, s83, 2
    v_add_u32 v10, s84, v10
    v_lshrrev_b32 v11, 3, v8
    v_lshlrev_b32 v11, 2, v11
    v_xor_b32 v10, v10, v11
    v_lshl_add_u32 v9, v10, 4, v9
    v_and_b32 v11, 1, v8
    v_lshl_add_u32 v26, v11, 3, v9
    v_add_u32 v27, 49152, v26
    v_add_u32 v28, 98304, v26
    """)
    ACC = 160
    for r in range(64):
        a("v_mov_b32 v%d, 0" % (ACC + r))
    k1_gf_compute(a)
    for part in (2, 0, 1):
        issue_part(1, part)
    stamp(a, 1)
    a("s_waitcnt vmcnt(6)")
    stamp(a, 2)
    k1_side_compute_store(a)
    FR = [32, 48]
    def reads(g):
        st, j = (g >> 2) % 3, g & 3
        f = FR[g & 1]
        for u in range(2):
            for rd in range(2):
                a("ds_read_b64_tr_b16 v[%d:%d], v%d offset:%d" % (f + 4 * u + 2 * rd, f + 4 * u + 2 * rd + 1, 26 + st,
                                                               32768 + 8192 * u + (16 * j + 4 * rd) * 128))
        for tt in range(2):
            a("ds_read_b128 v[%d:%d], v%d offset:%d" % (f + 8 + 4 * tt, f + 11 + 4 * tt, 14 + 4 * st + j, tt * 4096))
    def mfmas(g):
        f = FR[g & 1]
        if "nomfma" in EXP: return
        for u in range(2):
            for tt in range(2):
                c = ACC + 32 * u + 16 * tt
                a("v_mfma_f32_32x32x16_bf16 v[%d:%d], v[%d:%d], v[%d:%d], v[%d:%d]" %
                  (c, c + 15, f + 4 * u, f + 4 * u + 3, f + 8 + 4 * tt, f + 11 + 4 * tt, c, c + 15))
    vm = {0: 9, 1: 9, 2: 6, 3: 6, 4: 6, 5: 6, 6: 1}
    a("s_waitcnt vmcnt(%d)" % vm[0])
    stamp(a, 3)
    a("s_barrier")
    stamp(a, 4)
    reads(0)
    for g in range(28):
        i, j = g >> 2, g & 3
        if j == 3 and i < 6:
            a("s_waitcnt vmcnt(%d) lgkmcnt(0)" % vm[i + 1])
            a("s_barrier")
            reads(g + 1)
            mfmas(g)
        elif g == 27:
            a("s_waitcnt lgkmcnt(0)")
            mfmas(g)
        else:
            reads(g + 1)
            a("s_waitcnt lgkmcnt(6)")
            mfmas(g)
            if i + 2 <= 6:
                issue_part(i + 2, (2, 0, 1)[j])
            if g == 20:
                k1_prefetch_wd(a)
    stamp(a, 5)
    c0 = -2.0 * 0.7978845608028654 * LOG2E
    c1 = c0 * 0.044715
    a("v_mov_b32 v64, %s" % fl(c0))
    a("""
    s_lshl_b32 s84, s74, 3
    s_lshl_b32 s85, s82, 1
    s_add_u32 s84, s84, s85
    s_mul_i32 s84, s84, 112
    s_lshl_b32 s85, s75, 1
    s_add_u32 s85, s85, s83
    s_lshl_b32 s85, s85, 1
    s_add_u32 s84, s84, s85
    s_lshl_b32 s84, s84, 10
    s_add_u32 s85, s84, 114688
    v_lshlrev_b32 v65, 4, v1
    """)
    for tt in range(2):
        G = ACC + 16 * tt; U = ACC + 32 + 16 * tt
        for r0 in range(0, 16, 4):
            T = [66 + k for k in range(4)]
            Y = [70 + k for k in range(4)]
            for k in range(4): a("v_mul_f32 v%d, v%d, v%d" % (T[k], G + r0 + k, G + r0 + k))
            for k in range(4): a("v_fmamk_f32 v%d, v%d, %s, v64" % (T[k], T[k], fl(c1)))
            for k in range(4): a("v_mul_f32 v%d, v%d, v%d" % (T[k], T[k], G + r0 + k))
            for k in range(4): a("v_exp_f32 v%d, v%d" % (T[k], T[k]))
            for k in range(4): a("v_mul_f32 v%d, v%d, v%d" % (Y[k], G + r0 + k, U + r0 + k))
            for k in range(4): a("v_add_f32 v%d, 1.0, v%d" % (T[k], T[k]))
            for k in range(4): a("v_rcp_f32 v%d, v%d" % (T[k], T[k]))
            for k in range(4): a("v_mul_f32 v%d, v%d, v%d" % (Y[k], Y[k], T[k]))
            o = 76 + 8 * tt + r0 // 2
            a("v_cvt_pk_bf16_f32 v%d, v%d, v%d" % (o, Y[0], Y[1]))
            a("v_cvt_pk_bf16_f32 v%d, v%d, v%d" % (o + 1, Y[2], Y[3]))
        o = 76 + 8 * tt
        so = "s84" if tt == 0 else "s85"
        a("buffer_store_dwordx4 v[%d:%d], v65, s[20:23], %s offen%s" % (o, o + 3, so, HST))
        a("buffer_store_dwordx4 v[%d:%d], v65, s[20:23], %s offen offset:1024%s" % (o + 4, o + 7, so, HST))
    stamp(a, 6)
    stamp_flush(a, 0, 7)
    a("s_endpgm")

def gen_k1_dft(a):
    a("""
    s_sub_u32 s72, s2, 224
    s_lshr_b32 s74, s72, 1
    s_and_b32 s75, s72, 1
    """)
    a("""
    s_lshl_b32 s76, s74, 2
    s_lshr_b32 s77, s36, 1
    s_add_u32 s76, s76, s77
    s_mul_i32 s76, s76, 896
    s_and_b32 s77, s36, 1
    s_mul_i32 s77, s77, 917504
    s_add_u32 s76, s76, s77
    v_lshrrev_b32 v8, 3, v1
    v_mul_u32_u24 v9, 57344, v8
    v_add_u32 v9, s76, v9
    v_lshrrev_b32 v10, 4, v1
    v_and_b32 v11, 7, v1
    v_xor_b32 v12, v11, v10
    v_xor_b32 v13, 4, v12
    v_lshl_add_u32 v4, v12, 4, v9
    v_lshl_add_u32 v5, v13, 4, v9
    v_add_u32 v5, 458752, v5
    s_lshl_b32 s78, s36, 11
    """)
    def issue_stage(ks):
        a("s_mov_b32 s80, %d" % (ks * 128))
        for q in range(2):
            a("s_add_u32 m0, s78, %d" % (ks * 16384 + q * 1024))
            a("buffer_load_dwordx4 v%d, s[8:11], s80 offen lds" % (4 + q))
    issue_stage(0)
    k1_side_loads(a)
    a("""
    v_and_b32 v8, 31, v1
    v_lshlrev_b32 v8, 7, v8
    v_lshrrev_b32 v9, 5, v1
    v_lshrrev_b32 v10, 1, v1
    v_and_b32 v10, 7, v10
    """)
    for j in range(4):
        a("v_add_u32 v11, %d, v9" % (2 * j))
        a("v_xor_b32 v11, v11, v10")
        a("v_lshl_add_u32 v%d, v11, 4, v8" % (14 + j))
        a("v_add_u32 v%d, 65536, v%d" % (18 + j, 14 + j))
    a("""
    s_lshl_b32 s82, s75, 7
    s_lshl_b32 s83, s36, 4
    s_add_u32 s82, s82, s83
    v_and_b32 v8, 15, v1
    v_add_u32 v22, s82, v8
    v_cvt_f32_u32 v23, v22
    v_mul_f32 v23, %s, v23
    v_lshrrev_b32 v9, 5, v1
    v_lshlrev_b32 v9, 3, v9
    v_cvt_f32_u32 v9, v9
    v_lshrrev_b32 v10, 4, v1
    v_and_b32 v10, 1, v10
    v_cvt_f32_u32 v11, v10
    v_mul_f32 v11, 0.5, v11
    v_mul_f32 v11, 0.5, v11
    v_fma_f32 v24, v9, v23, v11
    """ % fl(1.0 / 448.0))
    a("""
    v_and_b32 v9, 31, v1
    v_and_b32 v11, 15, v9
    v_lshrrev_b32 v9, 4, v9
    v_lshl_add_u32 v9, v11, 1, v9
    v_mul_u32_u24 v25, 272, v9
    v_lshrrev_b32 v9, 5, v1
    v_lshl_add_u32 v25, v9, 4, v25
    s_mul_i32 s85, s36, 8704
    v_add_u32 v25, s85, v25
    v_lshrrev_b32 v9, 4, v1
    v_mul_u32_u24 v26, 272, v9
    v_lshl_add_u32 v26, v8, 4, v26
    v_add_u32 v26, s85, v26
    v_lshlrev_b32 v27, 12, v9
    v_lshl_add_u32 v27, v8, 4, v27
    s_lshl_b32 s84, s82, 13
    s_lshl_b32 s85, s74, 8
    s_add_u32 s84, s84, s85
    s_add_u32 s84, s84, 0x%x
    v_cos_f32 v28, v23
    v_add_f32 v28, v28, v28
    """ % PF_OFF)
    ACC = 160
    for r in range(64):
        a("v_mov_b32 v%d, 0" % (ACC + r))
    k1_gf_compute(a)
    issue_stage(1)
    issue_stage(2)
    stamp(a, 1)
    a("s_waitcnt vmcnt(4)")
    stamp(a, 2)
    k1_side_compute_store(a)
    FR = [32, 48]
    FF = [64, 68]
    def reads(g):
        st, j = g >> 2, g & 3
        f = FR[g & 1]
        for tt in range(4):
            off = st * 16384 + tt * 4096
            base = 14 + j
            if off >= 65536:
                off -= 65536; base = 18 + j
            a("ds_read_b128 v[%d:%d], v%d offset:%d" % (f + 4 * tt, f + 4 * tt + 3, base, off))
    def fgen(g):
        f = FF[g & 1]
        for i in range(2):
            a("v_fmamk_f32 v%d, v23, %s, v24" % (72 + i, fl(float(16 * g + i))))
        for i in range(2):
            a("v_cos_f32 v%d, v%d" % (72 + i, 72 + i))
        for i in range(2, 8):
            a("v_fma_f32 v%d, v28, v%d, -v%d" % (72 + i, 71 + i, 70 + i))
        for i in range(4):
            a("v_cvt_pk_bf16_f32 v%d, v%d, v%d" % (f + i, 72 + 2 * i, 73 + 2 * i))
    def mfmas(g):
        f = FR[g & 1]; ff = FF[g & 1]
        for tt in range(4):
            c = ACC + 16 * tt
            a("v_mfma_f32_32x32x16_bf16 v[%d:%d], v[%d:%d], v[%d:%d], v[%d:%d]" %
              (c, c + 15, f + 4 * tt, f + 4 * tt + 3, ff, ff + 3, c, c + 15))
    vm = {0: 7, 1: 7, 2: 7, 3: 4, 4: 4, 5: 3, 6: 1}
    fgen(0)
    a("s_waitcnt vmcnt(%d)" % vm[0])
    stamp(a, 3)
    a("s_barrier")
    stamp(a, 4)
    reads(0)
    for g in range(28):
        i, j = g >> 2, g & 3
        if j == 3 and i < 6:
            a("s_waitcnt vmcnt(%d)" % vm[i + 1])
            a("s_barrier")
            reads(g + 1)
            a("s_waitcnt lgkmcnt(4)")
            mfmas(g)
            fgen(g + 1)
        elif g == 27:
            a("s_waitcnt lgkmcnt(0)")
            mfmas(g)
        else:
            reads(g + 1)
            a("s_waitcnt lgkmcnt(4)")
            mfmas(g)
            fgen(g + 1)
            if j == 0 and i + 3 <= 6:
                issue_stage(i + 3)
            if g == 17:
                k1_prefetch_wd(a)
    stamp(a, 5)
    for tt in range(4):
        c = ACC + 16 * tt
        o = 32 + 8 * tt
        for k in range(8):
            a("v_cvt_pk_bf16_f32 v%d, v%d, v%d" % (o + k, c + 2 * k, c + 2 * k + 1))
        a("ds_write_b128 v25, v[%d:%d] offset:%d" % (o, o + 3, tt * 64))
        a("ds_write_b128 v25, v[%d:%d] offset:%d" % (o + 4, o + 7, tt * 64 + 32))
    a("s_waitcnt lgkmcnt(0)")
    for m in range(8):
        a("ds_read_b128 v[%d:%d], v26 offset:%d" % (64 + 4 * m, 67 + 4 * m, m * 4 * 272))
    for m in range(8):
        a("s_waitcnt lgkmcnt(%d)" % (7 - m))
        a("s_add_u32 s85, s84, %d" % (m * 16384))
        a("buffer_store_dwordx4 v[%d:%d], v27, s[20:23], s85 offen sc0 sc1" % (64 + 4 * m, 67 + 4 * m))
    stamp(a, 6)
    stamp_flush(a, 0, 7)
    a("s_endpgm")


def mfma(a, c, A, B):
    a("v_mfma_f32_32x32x16_bf16 v[%d:%d], v[%d:%d], v[%d:%d], v[%d:%d]" % (c, c + 15, A, A + 3, B, B + 3, c, c + 15))

def gen_k2(a):
    a.raw(kernel_header(K2))
    a("""
    s_cmp_ge_u32 s2, 225
    s_cbranch_scc1 K2_END
    s_load_dwordx2 s[4:5], s[0:1], 48
    s_load_dwordx2 s[60:61], s[0:1], 64
    s_load_dwordx2 s[6:7], s[0:1], 80
    v_and_b32 v1, 63, v0
    v_lshrrev_b32 v2, 6, v0
    v_readfirstlane_b32 s36, v2
    s_waitcnt lgkmcnt(0)
    """)
    srd(a, 8, 4, 1605632)
    srd(a, 20, 6, WS_SIZE)
    srd(a, 12, 60, 1835008)
    stamp(a, 0)
    tile_map_64(a)
    a("""
    s_lshl_b32 s78, s36, 14
    s_cmp_eq_u32 s36, 7
    s_cbranch_scc1 K2_FFT
    s_cmp_ge_u32 s2, 224
    s_cbranch_scc1 K2_END
    """)
    gen_k2_down(a)
    a("K2_FFT:")
    gen_k2_fft(a)
    a("K2_END:")
    a("s_endpgm")

def tile_map_64(a):
    a("""
    s_and_b32 s72, s2, 7
    s_lshl_b32 s72, s72, 2
    s_lshr_b32 s73, s2, 3
    s_and_b32 s74, s73, 3
    s_add_u32 s74, s74, s72
    s_lshr_b32 s75, s2, 5
    """)

def tr_addr(a, dst, rowmul_h, chunk_sgpr):
    sh = {4: 2, 8: 3}[rowmul_h]
    a("""
    v_and_b32 v8, 15, v1
    v_lshrrev_b32 v9, 2, v8
    v_lshrrev_b32 v10, 5, v1
    v_lshl_add_u32 v9, v10, %d, v9
    v_lshlrev_b32 v9, 7, v9
    v_lshrrev_b32 v10, 4, v1
    v_and_b32 v10, 1, v10
    v_lshlrev_b32 v10, 1, v10
    v_lshrrev_b32 v11, 1, v8
    v_and_b32 v11, 1, v11
    v_add_u32 v10, v10, v11
    v_add_u32 v10, %s, v10
    v_lshrrev_b32 v11, 3, v8
    v_lshlrev_b32 v11, 2, v11
    v_xor_b32 v10, v10, v11
    v_lshl_add_u32 v9, v10, 4, v9
    v_and_b32 v11, 1, v8
    v_lshl_add_u32 v%d, v11, 3, v9
    """ % (sh, chunk_sgpr, dst))

NSTEP = 16
DEPTH = int(os.environ.get("DEPTH", "6"))
def gen_k2_down(a):
    a("""
    v_lshrrev_b32 v8, 3, v1
    v_mul_u32_u24 v9, 896, v8
    v_lshrrev_b32 v10, 4, v1
    v_and_b32 v10, 1, v10
    v_lshlrev_b32 v10, 2, v10
    v_and_b32 v11, 7, v1
    v_xor_b32 v10, v11, v10
    v_lshl_add_u32 v3, v10, 4, v9
    s_lshl_b32 s76, s75, 7
    s_mul_i32 s77, s36, 229376
    s_add_u32 s76, s76, s77
    v_add_u32 v3, s76, v3
    s_mul_i32 s76, s74, 224
    s_lshl_b32 s77, s36, 4
    s_add_u32 s76, s76, s77
    s_lshl_b32 s76, s76, 10
    v_lshlrev_b32 v4, 4, v1
    v_add_u32 v4, s76, v4
    """)
    HF = 16; AF = [128, 136]; ACC = 144
    def hreg(s):
        return HF + 8 * (s % 8)
    def issue(s):
        slot = s % 8
        a("s_mov_b32 s80, %d" % (s * 14336))
        a("s_mov_b32 s81, %d" % (s * 14336 + 7168))
        a("s_mov_b32 s82, %d" % (H_OFF + s * 1024))
        a("s_mov_b32 s83, %d" % (H_OFF + s * 1024 + 114688))
        a("s_add_u32 m0, s78, %d" % (slot * 2048))
        a("buffer_load_dwordx4 v3, s[8:11], s80 offen lds")
        a("s_add_u32 m0, s78, %d" % (slot * 2048 + 1024))
        a("buffer_load_dwordx4 v3, s[8:11], s81 offen lds")
        a("buffer_load_dwordx4 v[%d:%d], v4, s[20:23], s82 offen" % (hreg(s), hreg(s) + 3))
        a("buffer_load_dwordx4 v[%d:%d], v4, s[20:23], s83 offen" % (hreg(s) + 4, hreg(s) + 7))
    a("s_barrier")
    if "nodown" in EXP:
        a("s_branch K2_TAIL")
    for s in range(DEPTH):
        issue(s)
    tr_addr(a, 5, 4, "0")
    a("v_add_u32 v5, s78, v5")
    a("v_xor_b32 v6, 64, v5")
    issued = [DEPTH]
    def wait_step(k):
        a("s_waitcnt vmcnt(%d)" % (4 * (issued[0] - k - 1)))
    def reads(s):
        f = AF[s & 1]; slot = s % 8
        for dtl in range(2):
            for rd in range(2):
                a("ds_read_b64_tr_b16 v[%d:%d], v%d offset:%d" % (f + 4 * dtl + 2 * rd, f + 4 * dtl + 2 * rd + 1, 5 + dtl,
                                                               slot * 2048 + rd * 1024))
    stamp(a, 1)
    wait_step(0)
    stamp(a, 2)
    reads(0)
    for s in range(NSTEP):
        if s + 1 < NSTEP:
            wait_step(s + 1); reads(s + 1)
            a("s_waitcnt lgkmcnt(4)")
        else:
            a("s_waitcnt lgkmcnt(0)")
        f = AF[s & 1]
        for dtl in range(2):
            for tt in range(2):
                c = ACC + 16 * (2 * dtl + tt); A = f + 4 * dtl; B = hreg(s) + 4 * tt
                a("v_mfma_f32_32x32x16_bf16 v[%d:%d], v[%d:%d], v[%d:%d], %s" %
                  (c, c + 15, A, A + 3, B, B + 3, "0" if s == 0 else "v[%d:%d]" % (c, c + 15)))
        if s + DEPTH < NSTEP:
            issue(s + DEPTH); issued[0] += 1
    a("K2_TAIL:")
    stamp(a, 3)
    a("""
    v_lshlrev_b32 v7, 4, v1
    v_and_b32 v12, 31, v1
    v_lshrrev_b32 v13, 5, v1
    s_lshl_b32 s80, s75, 16
    s_lshl_b32 s81, s36, 12
    s_add_u32 s80, s80, s81
    s_add_u32 s80, s80, 0x%x
    s_add_u32 s81, s80, 32768
    """ % GF_OFF)
    for dtl in range(2):
        for m in range(4):
            d = 16 + 4 * (4 * dtl + m)
            a("buffer_load_dwordx4 v[%d:%d], v7, s[20:23], s%d offen offset:%d" % (d, d + 3, 80 + dtl, m * 1024))
    a("""
    v_lshlrev_b32 v14, 2, v12
    s_lshl_b32 s82, s74, 8
    s_add_u32 s82, s82, 0x%x
    buffer_load_dword v48, v14, s[20:23], s82 offen
    buffer_load_dword v49, v14, s[20:23], s82 offen offset:128
    """ % GATE_OFF)
    a("""
    s_and_b32 s83, s36, 3
    s_lshl_b32 s83, s83, 6
    v_lshrrev_b32 v8, 3, v1
    v_add_u32 v8, s83, v8
    v_lshrrev_b32 v10, 4, v1
    v_and_b32 v10, 1, v10
    v_lshlrev_b32 v10, 2, v10
    v_and_b32 v11, 7, v1
    v_xor_b32 v10, v11, v10
    v_lshlrev_b32 v10, 4, v10
    s_lshr_b32 s84, s36, 2
    s_mul_i32 s84, s84, %d
    s_lshl_b32 s85, s74, 7
    s_add_u32 s84, s84, s85
    s_add_u32 s84, s84, 0x%x
    v_mov_b32 v15, 224
    s_mov_b32 s85, 0x%x
    """ % (225 * 4096, ZT_OFF, CNT_OFF))
    for b in range(8):
        a("v_add_u32 v9, %d, v8" % (8 * b))
        a("v_min_u32 v9, v9, v15")
        a("v_lshl_add_u32 v%d, v9, 12, v10" % (52 + b))
    tr_addr(a, 60, 8, "0")
    a("v_add_u32 v60, s78, v60")
    a("v_xor_b32 v61, 64, v60")
    a("""
    s_cmp_lg_u32 s36, 7
    s_cbranch_scc1 K2_GO
    K2_POLL:
    buffer_load_dwordx4 v[64:67], v7, s[20:23], s85 offen sc1
    s_waitcnt vmcnt(0)
    v_and_b32 v64, v64, v65
    v_and_b32 v66, v66, v67
    v_and_b32 v64, v64, v66
    v_cmp_eq_u32 vcc, 1, v64
    s_cmp_eq_u64 vcc, exec
    s_cbranch_scc1 K2_GO
    s_sleep 4
    s_branch K2_POLL
    K2_GO:
    s_waitcnt vmcnt(0)
    s_barrier
    """)
    stamp(a, 4)
    for b in range(8):
        a("s_add_u32 m0, s78, %d" % (b * 1024))
        a("buffer_load_dwordx4 v%d, s[20:23], s84 offen sc0 sc1 lds" % (52 + b))
    a("""
    v_sub_f32 v62, 1.0, v48
    v_sub_f32 v63, 1.0, v49
    v_mul_f32 v48, %s, v48
    v_mul_f32 v49, %s, v49
    """ % (fl(1.0 / (2048.0 * 448.0)), fl(1.0 / (2048.0 * 448.0))))
    for t4 in range(4):
        for r in range(16):
            a("v_mul_f32 v%d, v%d, v%d" % (ACC + 16 * t4 + r, ACC + 16 * t4 + r, 62 + (t4 & 1)))
    AA = 64
    ZF = [128, 132, 136, 140, 208, 212, 216, 220]
    for m in range(4):
        a("s_waitcnt vmcnt(%d)" % (6 - 2 * m))
        for tt in range(2):
            f = ZF[2 * m + tt]
            for rd in range(2):
                a("ds_read_b64_tr_b16 v[%d:%d], v%d offset:%d" % (f + 2 * rd, f + 2 * rd + 1, 60 + tt, (16 * m + 4 * rd) * 128))
    for m in range(4):
        a("s_waitcnt lgkmcnt(%d)" % (12 - 4 * m))
        for dtl in range(2):
            for tt in range(2):
                c = AA + 16 * (2 * dtl + tt); A = 16 + 4 * (4 * dtl + m); B = ZF[2 * m + tt]
                a("v_mfma_f32_32x32x16_bf16 v[%d:%d], v[%d:%d], v[%d:%d], %s" %
                  (c, c + 15, A, A + 3, B, B + 3, "0" if m == 0 else "v[%d:%d]" % (c, c + 15)))
    for t4 in range(4):
        for r in range(16):
            a("v_fma_f32 v%d, v%d, v%d, v%d" % (ACC + 16 * t4 + r, AA + 16 * t4 + r, 48 + (t4 & 1), ACC + 16 * t4 + r))
    stamp(a, 5)
    a("""
    v_add_u32 v8, s78, v7
    s_lshl_b32 s79, s36, 11
    v_add_u32 v9, s79, v7
    v_add_u32 v10, 65536, v9
    """)
    for p in range(8):
        for q in range(2):
            c = ACC + 8 * p + 4 * q
            a("ds_write_b128 v8, v[%d:%d] offset:%d" % (c, c + 3, p * 2048 + q * 1024))
    a("s_waitcnt lgkmcnt(0)")
    a("s_barrier")
    for w2 in range(8):
        for q in range(2):
            d = 16 + 8 * w2 + 4 * q
            a("ds_read_b128 v[%d:%d], v%d offset:%d" % (d, d + 3, 9 if w2 < 4 else 10, (w2 & 3) * 16384 + q * 1024))
    a("""
    s_lshr_b32 s80, s36, 1
    s_and_b32 s81, s80, 1
    s_lshr_b32 s80, s80, 1
    s_lshl_b32 s82, s74, 1
    s_add_u32 s82, s82, s81
    s_mul_i32 s82, s82, 896
    s_lshl_b32 s83, s75, 1
    s_add_u32 s83, s83, s80
    s_lshl_b32 s83, s83, 6
    s_add_u32 s82, s82, s83
    s_and_b32 s83, s36, 1
    s_lshl_b32 s83, s83, 5
    s_add_u32 s82, s82, s83
    v_mul_u32_u24 v11, 57344, v12
    v_lshl_add_u32 v11, v13, 4, v11
    """)
    for w2 in range(1, 8):
        a("s_waitcnt lgkmcnt(%d)" % (2 * (7 - w2)))
        for k in range(8):
            a("v_add_f32 v%d, v%d, v%d" % (16 + k, 16 + k, 16 + 8 * w2 + k))
    for k in range(4):
        a("v_cvt_pk_bf16_f32 v%d, v%d, v%d" % (80 + k, 16 + 2 * k, 17 + 2 * k))
    a("v_permlane32_swap_b32 v80, v82")
    a("v_permlane32_swap_b32 v81, v83")
    a("buffer_store_dwordx4 v[80:83], v11, s[12:15], s82 offen")
    stamp(a, 6)
    stamp_flush(a, 1, 7)
    a("s_endpgm")

def gen_k2_fft(a):
    a("""
    s_setprio 3
    s_lshl_b32 s73, s2, 13
    s_add_u32 s66, s73, 0x%x
    s_add_u32 s67, s66, 4096
    s_add_u32 s76, s73, 0x%x
    v_and_b32 v3, 31, v1
    v_lshrrev_b32 v4, 5, v1
    v_lshlrev_b32 v2, 6, v3
    v_lshl_add_u32 v2, v4, 4, v2
    v_lshlrev_b32 v5, 8, v3
    v_lshl_add_u32 v5, v4, 4, v5
    v_lshlrev_b32 v7, 4, v1
    v_add_u32 v6, s78, v7
    """ % (PF_OFF, WT_OFF))
    CR, CI, NCI = 16, 24, 32
    ER, EI = 40, 72
    WV = 104
    ACC = 136
    FA, FB, FC = 200, 216, 232
    PR, PI = 200, 216
    for c, base, so in ((0, PR, "s66"), (1, PI, "s67")):
        for T in range(2):
            for j in range(2):
                d = base + 4 * (2 * T + j)
                a("buffer_load_dwordx4 v[%d:%d], v2, s[20:23], %s offen offset:%d" % (d, d + 3, so, T * 2048 + j * 32))
    for e in range(6):
        if e % 4 == 0:
            a("s_mov_b32 s79, 0x%x" % (TB_OFF + e * 1024))
        a("buffer_load_dwordx4 v[%d:%d], v7, s[20:23], s79 offen offset:%d" % (16 + 4 * e, 19 + 4 * e, (e % 4) * 1024))
    def tw_dma(c):
        a("s_add_u32 m0, s78, %d" % (c * 1024))
        a("s_mov_b32 s79, 0x%x" % (TB_OFF + (22 + c) * 1024))
        a("buffer_load_dwordx4 v7, s[20:23], s79 offen lds")
    for c in range(16):
        tw_dma(c)
    for e in range(6, 22):
        if (e - 6) % 4 == 0:
            a("s_mov_b32 s79, 0x%x" % (TB_OFF + e * 1024))
        a("buffer_load_dwordx4 v[%d:%d], v7, s[20:23], s79 offen offset:%d" % (16 + 4 * e, 19 + 4 * e, ((e - 6) % 4) * 1024))
    for U in range(2):
        for q in range(4):
            d = WV + 4 * (4 * U + q)
            a("buffer_load_dwordx4 v[%d:%d], v5, s[20:23], s76 offen offset:%d" % (d, d + 3, U * 128 + q * 32))
    a("s_barrier")
    stamp(a, 1)
    RE = [ACC, ACC + 16]; IM = [ACC + 32, ACC + 48]
    first = set()
    def mf(c, A, B):
        z = c not in first
        first.add(c)
        a("v_mfma_f32_32x32x16_bf16 v[%d:%d], v[%d:%d], v[%d:%d], %s" %
          (c, c + 15, A, A + 3, B, B + 3, "0" if z else "v[%d:%d]" % (c, c + 15)))
    a("s_waitcnt vmcnt(40)")
    stamp(a, 2)
    for T in range(2):
        for j in range(2):
            mf(RE[T], PR + 4 * (2 * T + j), CR + 4 * j)
            mf(IM[T], PR + 4 * (2 * T + j), CI + 4 * j)
        for j in range(2):
            mf(RE[T], PI + 4 * (2 * T + j), NCI + 4 * j)
            mf(IM[T], PI + 4 * (2 * T + j), CR + 4 * j)
    TWB = [248, 8]
    def twiddle(tbl, sign):
        base = tbl * 16384
        def rd(idx):
            T, q = idx >> 2, idx & 3
            t = TWB[idx & 1]
            a("ds_read_b128 v[%d:%d], v6 offset:%d" % (t, t + 3, base + ((T * 4 + q) * 2) * 1024))
            a("ds_read_b128 v[%d:%d], v6 offset:%d" % (t + 4, t + 7, base + ((T * 4 + q) * 2 + 1) * 1024))
        rd(0)
        for idx in range(8):
            T, q = idx >> 2, idx & 3
            if idx + 1 < 8:
                rd(idx + 1)
                a("s_waitcnt lgkmcnt(2)")
            else:
                a("s_waitcnt lgkmcnt(0)")
            t = TWB[idx & 1]
            for k in range(4):
                xr, xi = RE[T] + 4 * q + k, IM[T] + 4 * q + k
                c, s = t + k, t + 4 + k
                a("v_mul_f32 v7, v%d, v%d" % (xr, s))
                a("v_mul_f32 v%d, v%d, v%d" % (s, xi, s))
                if sign < 0:
                    a("v_fma_f32 v%d, v%d, v%d, v%d" % (xr, xr, c, s))
                    a("v_fma_f32 v%d, v%d, v%d, -v7" % (xi, xi, c))
                else:
                    a("v_fma_f32 v%d, v%d, v%d, -v%d" % (xr, xr, c, s))
                    a("v_fma_f32 v%d, v%d, v%d, v7" % (xi, xi, c))
    def pack(dst, src_tiles, neg=False):
        n = "-" if neg else ""
        for T in range(2):
            for k in range(8):
                a("v_cvt_pk_bf16_f32 v%d, %sv%d, %sv%d" % (dst + 8 * T + k, n, src_tiles[T] + 2 * k, n, src_tiles[T] + 2 * k + 1))
    a("s_waitcnt vmcnt(24)")
    for c in range(16, 32):
        tw_dma(c)
    twiddle(0, -1)
    pack(FA, RE); pack(FB, IM); pack(FC, IM, neg=True)
    a("s_waitcnt vmcnt(24)")
    first.clear()
    for U in range(2):
        for jj in range(4):
            e = 4 * (4 * U + jj)
            mf(RE[U], ER + e, FA + 4 * jj)
            mf(IM[U], EI + e, FA + 4 * jj)
        for jj in range(4):
            e = 4 * (4 * U + jj)
            mf(RE[U], EI + e, FC + 4 * jj)
            mf(IM[U], ER + e, FB + 4 * jj)
    stamp(a, 3)
    a("s_waitcnt vmcnt(16)")
    for U in range(2):
        for r in range(16):
            w = WV + 16 * U + r
            xr, xi = RE[U] + r, IM[U] + r
            a("v_lshlrev_b32 v10, 16, v%d" % w)
            a("v_and_b32 v11, 0xffff0000, v%d" % w)
            a("v_mul_f32 v12, v%d, v11" % xr)
            a("v_mul_f32 v13, v%d, v11" % xi)
            a("v_fma_f32 v%d, v%d, v10, -v13" % (xr, xr))
            a("v_fma_f32 v%d, v%d, v10, v12" % (xi, xi))
    pack(FA, RE); pack(FB, IM); pack(FC, RE, neg=True)
    first.clear()
    for V in range(2):
        for jj in range(4):
            e = 4 * (4 * V + jj)
            mf(RE[V], FA + 4 * jj, ER + e)
            mf(IM[V], FB + 4 * jj, ER + e)
        for jj in range(4):
            e = 4 * (4 * V + jj)
            mf(RE[V], FB + 4 * jj, EI + e)
            mf(IM[V], FC + 4 * jj, EI + e)
    a("s_waitcnt vmcnt(0)")
    twiddle(1, +1)
    pack(FA, RE); pack(FB, IM)
    first.clear()
    for V in range(2):
        for j in range(2):
            mf(RE[V], CR + 4 * j, FA + 4 * (2 * V + j))
            mf(IM[V], CR + 4 * j, FB + 4 * (2 * V + j))
        for j in range(2):
            mf(RE[V], CI + 4 * j, FB + 4 * (2 * V + j))
            mf(IM[V], NCI + 4 * j, FA + 4 * (2 * V + j))
    stamp(a, 4)
    a("""
    v_lshlrev_b32 v8, 6, v3
    v_lshl_add_u32 v8, v4, 5, v8
    s_lshl_b32 s77, s2, 12
    s_add_u32 s77, s77, 0x%x
    s_add_u32 s79, s77, %d
    """ % (ZT_OFF, 225 * 4096))
    o = 16
    for c, tiles, so in ((0, RE, "s77"), (1, IM, "s79")):
        for V in range(2):
            t = tiles[V]
            pos = {0: 0, 2: 2, 1: 4, 3: 6}
            for q in range(4):
                a("v_cvt_pk_bf16_f32 v%d, v%d, v%d" % (o + pos[q], t + 4 * q, t + 4 * q + 1))
                a("v_cvt_pk_bf16_f32 v%d, v%d, v%d" % (o + pos[q] + 1, t + 4 * q + 2, t + 4 * q + 3))
            for x, y in ((0, 2), (1, 3), (4, 6), (5, 7)):
                a("v_permlane32_swap_b32 v%d, v%d" % (o + x, o + y))
            a("buffer_store_dwordx4 v[%d:%d], v8, s[20:23], %s offen offset:%d sc0 sc1" % (o, o + 3, so, V * 2048))
            a("buffer_store_dwordx4 v[%d:%d], v8, s[20:23], %s offen offset:%d sc0 sc1" % (o + 4, o + 7, so, V * 2048 + 16))
            o += 8
    a("""
    s_lshl_b32 s77, s2, 2
    s_add_u32 s77, s77, 0x%x
    v_mov_b32 v8, s77
    v_mov_b32 v9, 1
    s_waitcnt vmcnt(0)
    s_mov_b64 exec, 1
    buffer_store_dword v9, v8, s[20:23], 0 offen sc0 sc1
    s_mov_b64 exec, -1
    s_setprio 0
    s_cmp_ge_u32 s2, 224
    s_cbranch_scc1 K2_END
    """ % CNT_OFF)
    for r in range(64):
        a("v_mov_b32 v%d, 0" % (144 + r))
    a("s_branch K2_TAIL")

def main(out):
    a = Asm()
    hdr = open("gated_mix__spectral_gfnet__glu_gated_geglu__prompt.s.ref").read().split("\n")
    for l in hdr:
        if l.startswith(";") and "@launch" not in l and "Override" not in l and "grid=ceil" not in l:
            a.raw(l)
    a.raw("; @launch kernel=%s grid=(256,1,1) block=(512,1,1) lds=147456" % K1)
    a.raw("; @launch kernel=%s grid=(225,1,1) block=(512,1,1) lds=147456" % K2)
    a.raw('.amdgcn_target "amdgcn-amd-amdhsa--gfx950"\n.text')
    gen_k1(a)
    gen_k2(a)
    a.raw('.section .rodata,"a"')
    a.raw(kernel_desc(K1, 224, 102))
    a.raw(kernel_desc(K2, 256, 102))
    open(out, "w").write(a.finalize())
    print("nops inserted", a.nops_inserted)

if __name__ == "__main__":
    if len(sys.argv) > 2 and sys.argv[2] == "stamp":
        STAMP = True
    main(sys.argv[1] if len(sys.argv) > 1 else "k.s")
```

```python
import sys, struct, math
sys.path.insert(0, "tools")
from asmgen import *

def f2u(x):
    return struct.unpack("<I", struct.pack("<f", x))[0]
def fl(x):
    return "0x%08x" % f2u(x)

H_OFF    = 0x0000000
PF_OFF   = 0x0700000
WT_OFF   = 0x0900000
GATE_OFF = 0x0B00000
GF_OFF   = 0x0B10000
TB_OFF   = 0x0B80000
CNT_OFF  = 0x0B85800
ZT_OFF   = 0x0C00000
BQ_OFF   = 0x0E00000
WS_SIZE  = 0x1100000

K1 = "k1_gateup_dft_kernel"
K2 = "k2_down_fft_kernel"
K3 = "k3_idft_mix_kernel"

LOG2E = 1.4426950408889634

STAMP = False
import os
EXP = os.environ.get("EXP", "")
HST = "" if "hplain" in EXP else " sc0 sc1"
STAMP_OFF = 0x1000000
def stamp(a, i):
    if not STAMP: return
    a("s_memrealtime s[98:99]")
    a("s_waitcnt lgkmcnt(0)")
    a("s_mov_b32 s%d, s98" % (90 + i))
    if i in (4, 5) and "clk" in EXP:
        a("s_memtime s[98:99]")
        a("s_waitcnt lgkmcnt(0)")
        a("s_mov_b32 s%d, s98" % (96 + i))
    if i in (2, 3) and "ck2" in EXP:
        a("s_memtime s[98:99]")
        a("s_waitcnt lgkmcnt(0)")
        a("s_mov_b32 s%d, s98" % (98 + i))
def stamp_flush(a, k, n):
    if not STAMP: return
    a("s_waitcnt vmcnt(0)")
    stamp(a, n)
    a("v_mov_b32 v2, 0")
    for i in range(n + 1):
        a("v_writelane_b32 v2, s%d, %d" % (90 + i, i))
    if ("clk" in EXP and k == 0) or ("ck2" in EXP and k == 1):
        a("v_writelane_b32 v2, s100, 8")
        a("v_writelane_b32 v2, s101, 9")
    a("s_lshl_b32 s98, s2, 3")
    a("s_add_u32 s98, s98, s36")
    a("s_lshl_b32 s98, s98, 6")
    a("s_add_u32 s98, s98, 0x%x" % (STAMP_OFF + k * 0x20000))
    a("v_lshlrev_b32 v3, 2, v1")
    a("s_mov_b64 exec, 0xffff")
    a("buffer_store_dword v2, v3, s[20:23], s98 offen")

def srd(a, base, ptr, nbytes):
    a("s_mov_b32 s%d, s%d" % (base, ptr))
    a("s_mov_b32 s%d, s%d" % (base + 1, ptr + 1))
    a("s_mov_b32 s%d, %d" % (base + 2, nbytes))
    a("s_mov_b32 s%d, 0x00020000" % (base + 3))

sX, sWg, sWu, sWS, sWr, sWi, sGw = 8, 12, 16, 20, 24, 28, 32
sWave = 36

def k1_side_loads(a):
    a("""
    s_and_b32 s40, s2, 31
    s_lshr_b32 s41, s2, 5
    s_lshl_b32 s41, s41, 3
    v_and_b32 v116, 255, v0
    v_lshrrev_b32 v117, 8, v0
    v_lshlrev_b32 v117, 2, v117
    v_add_u32 v117, s41, v117
    v_lshlrev_b32 v118, 5, v117
    v_add_u32 v118, s40, v118
    v_mul_u32_u24 v118, 450, v118
    v_lshl_add_u32 v118, v116, 1, v118
    s_mov_b32 s42, 14400
    s_mov_b32 s43, 28800
    s_mov_b32 s44, 43200
    buffer_load_ushort v100, v118, s[24:27], 0 offen
    buffer_load_ushort v101, v118, s[24:27], s42 offen
    buffer_load_ushort v102, v118, s[24:27], s43 offen
    buffer_load_ushort v103, v118, s[24:27], s44 offen
    buffer_load_ushort v104, v118, s[28:31], 0 offen
    buffer_load_ushort v105, v118, s[28:31], s42 offen
    buffer_load_ushort v106, v118, s[28:31], s43 offen
    buffer_load_ushort v107, v118, s[28:31], s44 offen
    """)
    a("""
    v_lshlrev_b32 v118, 5, v116
    v_add_u32 v118, s40, v118
    v_lshl_add_u32 v118, v118, 6, v117
    v_lshlrev_b32 v118, 2, v118
    v_add_u32 v118, 0x%x, v118
    """ % WT_OFF)
    a("""
    s_lshl_b32 s45, s2, 3
    s_add_u32 s45, s45, s36
    s_mul_i32 s46, s45, 896
    v_lshlrev_b32 v119, 4, v1
    v_add_u32 v120, s46, v119
    v_mov_b32 v121, 0x7ffffff0
    v_cmp_gt_u32 vcc, 56, v1
    v_cndmask_b32 v120, v121, v120, vcc
    buffer_load_dwordx4 v[108:111], v120, s[8:11], 0 offen
    buffer_load_dwordx4 v[112:115], v119, s[32:35], 0 offen
    """)

_uid = [0]
def k1_gf_compute(a):
    _uid[0] += 1
    L = "TJ%d" % _uid[0]
    a("""
    s_mov_b32 s53, 0x7ffffff0
    s_cmp_ge_u32 s45, 38
    s_cbranch_scc1 %s_E
    s_lshl_b32 s53, s45, 10
    s_add_u32 s53, s53, 0x%x
    s_cmp_ge_u32 s45, 22
    s_cbranch_scc1 %s_F
    v_and_b32 v129, 31, v1
    v_lshrrev_b32 v130, 5, v1
    s_mov_b32 s48, s45
    s_cmp_ge_u32 s48, 6
    s_cbranch_scc1 %s_X
    s_mov_b32 s52, %s
    s_mov_b32 s47, 0
    s_and_b32 s49, s48, 1
    s_lshl_b32 s49, s49, 4
    s_lshr_b32 s50, s48, 1
    s_cmp_eq_u32 s50, 1
    s_cselect_b32 s51, 0x3e800000, 0
    s_cmp_eq_u32 s50, 2
    s_cselect_b32 s50, 0xbe800000, s51
    s_branch %s_C
    %s_X:
    s_sub_u32 s48, s48, 6
    s_mov_b32 s52, %s
    s_lshr_b32 s47, s48, 2
    s_and_b32 s47, s47, 1
    s_lshl_b32 s47, s47, 5
    s_and_b32 s49, s48, 3
    s_lshl_b32 s49, s49, 4
    s_cmp_ge_u32 s48, 8
    s_cselect_b32 s50, 0x3e800000, 0
    %s_C:
    v_add_u32 v129, s47, v129
    v_cvt_f32_u32 v129, v129
    v_mul_f32 v129, s52, v129
    v_lshlrev_b32 v130, 2, v130
    v_add_u32 v130, s49, v130
    v_cvt_f32_u32 v130, v130
    v_mov_b32 v131, s50
    """ % (L, TB_OFF, L, L, fl(1.0 / 32), L, L, fl(1.0 / 64), L))
    for i in range(8):
        t = 136 + i
        a("v_add_f32 v144, %s, v130" % fl(float(8 * (i >> 2) + (i & 3))))
        a("v_fma_f32 v%d, v144, v129, v131" % t)
        a("v_cos_f32 v%d, v%d" % (t, t))
    for i in range(4):
        a("v_cvt_pk_bf16_f32 v%d, v%d, v%d" % (124 + i, 136 + 2 * i, 137 + 2 * i))
    a("s_branch %s_E" % L)
    a("%s_F:" % L)
    a("""
    s_sub_u32 s48, s45, 22
    s_lshl_b32 s48, s48, 4
    v_lshrrev_b32 v144, 2, v1
    v_add_u32 v144, s48, v144
    v_cmp_lt_u32 vcc, 224, v144
    v_cndmask_b32 v124, 0, 1, vcc
    """)
    a("%s_E:" % L)
    a("""
    v_lshlrev_b32 v128, 4, v1
    v_add_u32 v128, s53, v128
    """)

def k1_side_compute_store(a):
    for q in range(4):
        a("v_lshl_or_b32 v%d, v%d, 16, v%d" % (100 + q, 104 + q, 100 + q))
    a("v_mov_b32 v136, 0")
    for q in range(4):
        a("v_lshlrev_b32 v137, 16, v%d" % (108 + q))
        a("v_lshlrev_b32 v138, 16, v%d" % (112 + q))
        a("v_fmac_f32 v136, v137, v138")
        a("v_and_b32 v137, 0xffff0000, v%d" % (108 + q))
        a("v_and_b32 v138, 0xffff0000, v%d" % (112 + q))
        a("v_fmac_f32 v136, v137, v138")
    for sh in (1, 2, 4, 8):
        a("v_add_f32_dpp v136, v136, v136 row_shr:%d row_mask:0xf bank_mask:0xf bound_ctrl:0" % sh)
    a("""
    v_readlane_b32 s54, v136, 15
    v_readlane_b32 s55, v136, 31
    v_readlane_b32 s56, v136, 47
    v_readlane_b32 s57, v136, 63
    v_mov_b32 v136, s54
    v_add_f32 v136, s55, v136
    v_add_f32 v136, s56, v136
    v_add_f32 v136, s57, v136
    v_mul_f32 v136, %s, v136
    v_exp_f32 v136, v136
    v_add_f32 v136, 1.0, v136
    v_rcp_f32 v136, v136
    s_and_b32 s54, s45, 63
    s_lshl_b32 s54, s54, 5
    s_lshr_b32 s55, s45, 6
    s_add_u32 s54, s54, s55
    s_lshl_b32 s54, s54, 2
    s_add_u32 s54, s54, 0x%x
    v_mov_b32 v137, s54
    buffer_store_dwordx4 v[124:127], v128, s[20:23], 0 offen sc0 sc1
    v_cmp_gt_u32 vcc, 225, v116
    s_and_saveexec_b64 s[58:59], vcc
    buffer_store_dwordx4 v[100:103], v118, s[20:23], 0 offen sc0 sc1
    s_mov_b64 exec, 1
    buffer_store_dword v136, v137, s[20:23], 0 offen
    s_mov_b64 exec, s[58:59]
    """ % (fl(-LOG2E), GATE_OFF))

def k1_prefetch_wd(a):
    a("""
    s_lshr_b32 s86, s2, 3
    s_lshl_b32 s86, s86, 3
    s_add_u32 s86, s86, s36
    s_mul_i32 s86, s86, 6272
    v_lshlrev_b32 v146, 7, v1
    buffer_load_dword v147, v146, s[64:67], s86 offen
    """)

def k1_prefetch_in(a, L):
    a("""
    s_lshr_b32 s40, s2, 3
    s_lshl_b32 s40, s40, 3
    s_add_u32 s40, s40, s36
    s_min_u32 s40, s40, 209
    s_mul_i32 s41, s40, 9363
    s_lshr_b32 s41, s41, 16
    s_mul_i32 s42, s41, 7
    s_sub_u32 s42, s40, s42
    s_lshl_b32 s42, s42, 7
    s_and_b32 s43, s2, 7
    s_cmp_ge_u32 s41, 16
    s_cbranch_scc1 K1_PFW%(L)s
    s_and_b32 s44, s43, 1
    s_lshl_b32 s44, s44, 5
    s_lshl_b32 s45, s41, 1
    s_add_u32 s44, s44, s45
    s_mul_i32 s44, s44, 896
    s_add_u32 s44, s44, s42
    v_and_b32 v146, 31, v1
    v_mul_u32_u24 v146, 57344, v146
    v_lshrrev_b32 v147, 5, v1
    v_mul_u32_u24 v147, 896, v147
    v_add_u32 v146, v146, v147
    buffer_load_dword v148, v146, s[8:11], s44 offen
    s_branch K1_PFE%(L)s
    K1_PFW%(L)s:
    s_lshr_b32 s44, s43, 1
    s_mul_i32 s44, s44, 896
    s_add_u32 s44, s44, s42
    v_mul_u32_u24 v146, 3584, v1
    s_cmp_ge_u32 s41, 23
    s_cbranch_scc1 K1_PFU%(L)s
    s_sub_u32 s45, s41, 16
    s_mul_i32 s45, s45, 229376
    s_add_u32 s44, s44, s45
    buffer_load_dword v148, v146, s[12:15], s44 offen
    s_branch K1_PFE%(L)s
    K1_PFU%(L)s:
    s_sub_u32 s45, s41, 23
    s_mul_i32 s45, s45, 229376
    s_add_u32 s44, s44, s45
    buffer_load_dword v148, v146, s[16:19], s44 offen
    K1_PFE%(L)s:
    """ % {"L": L})

def gen_k1(a):
    a.raw(kernel_header(K1))
    a("""
    s_cmp_ge_u32 s2, 256
    s_cbranch_scc1 K1_END
    s_load_dwordx2 s[4:5], s[0:1], 0
    s_load_dwordx4 s[60:63], s[0:1], 8
    s_load_dwordx4 s[64:67], s[0:1], 32
    s_load_dwordx2 s[68:69], s[0:1], 56
    s_load_dwordx2 s[70:71], s[0:1], 80
    s_load_dwordx2 s[6:7], s[0:1], 48
    v_and_b32 v1, 63, v0
    v_lshrrev_b32 v2, 6, v0
    v_readfirstlane_b32 s36, v2
    s_waitcnt lgkmcnt(0)
    """)
    srd(a, sX, 4, 1835008)
    srd(a, sWr, 60, 921600)
    srd(a, sWi, 62, 921600)
    srd(a, sWg, 64, 1605632)
    srd(a, sWu, 66, 1605632)
    srd(a, sGw, 68, 896)
    srd(a, sWS, 70, WS_SIZE)
    srd(a, 64, 6, 1605632)
    stamp(a, 0)
    if "pf0" in EXP:
        k1_prefetch_in(a, "A")
    a("""
    s_cmp_ge_u32 s2, 224
    s_cbranch_scc1 K1_DFT
    """)
    gen_k1_gateup(a)
    a("K1_DFT:")
    gen_k1_dft(a)
    a("K1_END:")
    a("s_endpgm")

def gen_k1_gateup(a):
    a("""
    s_and_b32 s72, s2, 7
    s_lshr_b32 s73, s2, 3
    s_and_b32 s74, s72, 1
    s_lshl_b32 s74, s74, 2
    s_and_b32 s75, s73, 3
    s_add_u32 s74, s74, s75
    s_lshr_b32 s75, s72, 1
    s_mul_i32 s75, s75, 7
    s_lshr_b32 s76, s73, 2
    s_add_u32 s75, s75, s76
    """)
    if "maprow" in EXP:
        a("s_and_b32 s74, s2, 7")
        a("s_lshr_b32 s75, s2, 3")
    a("""
    s_lshl_b32 s76, s74, 3
    s_add_u32 s76, s76, s36
    s_mul_i32 s76, s76, 896
    v_lshrrev_b32 v8, 3, v1
    v_mul_u32_u24 v9, 57344, v8
    v_add_u32 v9, s76, v9
    v_lshrrev_b32 v10, 4, v1
    v_and_b32 v11, 7, v1
    v_xor_b32 v12, v11, v10
    v_xor_b32 v13, 4, v12
    v_lshl_add_u32 v4, v12, 4, v9
    v_lshl_add_u32 v5, v13, 4, v9
    v_add_u32 v5, 458752, v5
    v_add_u32 v6, 917504, v4
    v_add_u32 v7, 917504, v5
    """)
    a("""
    s_lshl_b32 s77, s36, 3
    v_add_u32 v9, s77, v8
    v_mul_u32_u24 v9, 3584, v9
    v_and_b32 v10, 1, v10
    v_lshlrev_b32 v10, 2, v10
    v_xor_b32 v10, v11, v10
    v_lshl_add_u32 v3, v10, 4, v9
    s_lshl_b32 s77, s75, 7
    v_add_u32 v3, s77, v3
    s_lshl_b32 s78, s36, 12
    s_lshl_b32 s79, s36, 10
    """)
    def issue_part(ks, part):
        sb = (ks % 3) * 49152
        if part < 2:
            a("s_mov_b32 s80, %d" % (ks * 128))
            for q in (2 * part, 2 * part + 1):
                a("s_add_u32 m0, s78, %d" % (sb + q * 1024))
                a("buffer_load_dwordx4 v%d, s[8:11], s80 offen lds" % (4 + q))
        else:
            a("s_mov_b32 s81, %d" % (ks * 229376))
            a("s_add_u32 m0, s79, %d" % (sb + 32768))
            a("buffer_load_dwordx4 v3, s[12:15], s81 offen lds")
            a("s_add_u32 m0, s79, %d" % (sb + 40960))
            a("buffer_load_dwordx4 v3, s[16:19], s81 offen lds")
    for part in (2, 0, 1):
        issue_part(0, part)
    if "pf1" in EXP:
        k1_prefetch_in(a, "B")
    k1_side_loads(a)
    a("""
    s_lshr_b32 s82, s36, 1
    s_and_b32 s83, s36, 1
    s_lshl_b32 s84, s82, 13
    v_and_b32 v8, 31, v1
    v_lshlrev_b32 v8, 7, v8
    v_add_u32 v8, s84, v8
    v_lshrrev_b32 v9, 5, v1
    v_lshrrev_b32 v10, 1, v1
    v_and_b32 v10, 7, v10
    """)
    for j in range(4):
        a("v_add_u32 v11, %d, v9" % (2 * j))
        a("v_xor_b32 v11, v11, v10")
        a("v_lshl_add_u32 v%d, v11, 4, v8" % (14 + j))
        a("v_add_u32 v%d, 49152, v%d" % (18 + j, 14 + j))
        a("v_add_u32 v%d, 98304, v%d" % (22 + j, 14 + j))
    a("""
    v_and_b32 v8, 15, v1
    v_lshrrev_b32 v9, 2, v8
    v_lshrrev_b32 v10, 5, v1
    v_lshl_add_u32 v9, v10, 3, v9
    v_lshlrev_b32 v9, 7, v9
    v_lshrrev_b32 v10, 4, v1
    v_and_b32 v10, 1, v10
    v_lshlrev_b32 v10, 1, v10
    v_lshrrev_b32 v11, 1, v8
    v_and_b32 v11, 1, v11
    v_add_u32 v10, v10, v11
    s_lshl_b32 s84, s83, 2
    v_add_u32 v10, s84, v10
    v_lshrrev_b32 v11, 3, v8
    v_lshlrev_b32 v11, 2, v11
    v_xor_b32 v10, v10, v11
    v_lshl_add_u32 v9, v10, 4, v9
    v_and_b32 v11, 1, v8
    v_lshl_add_u32 v26, v11, 3, v9
    v_add_u32 v27, 49152, v26
    v_add_u32 v28, 98304, v26
    """)
    ACC = 160
    for r in range(64):
        a("v_mov_b32 v%d, 0" % (ACC + r))
    k1_gf_compute(a)
    for part in (2, 0, 1):
        issue_part(1, part)
    PF2 = 1 if "pf2" in EXP else 0
    if PF2:
        a("s_mov_b32 s47, s45")
        k1_prefetch_in(a, "D")
        a("s_mov_b32 s45, s47")
    stamp(a, 1)
    a("s_waitcnt vmcnt(%d)" % (6 + PF2))
    stamp(a, 2)
    k1_side_compute_store(a)
    FR = [32, 48]
    def reads(g):
        st, j = (g >> 2) % 3, g & 3
        f = FR[g & 1]
        for u in range(2):
            for rd in range(2):
                a("ds_read_b64_tr_b16 v[%d:%d], v%d offset:%d" % (f + 4 * u + 2 * rd, f + 4 * u + 2 * rd + 1, 26 + st,
                                                               32768 + 8192 * u + (16 * j + 4 * rd) * 128))
        for tt in range(2):
            a("ds_read_b128 v[%d:%d], v%d offset:%d" % (f + 8 + 4 * tt, f + 11 + 4 * tt, 14 + 4 * st + j, tt * 4096))
    def mfmas(g):
        f = FR[g & 1]
        if "nomfma" in EXP: return
        for u in range(2):
            for tt in range(2):
                c = ACC + 32 * u + 16 * tt
                a("v_mfma_f32_32x32x16_bf16 v[%d:%d], v[%d:%d], v[%d:%d], v[%d:%d]" %
                  (c, c + 15, f + 4 * u, f + 4 * u + 3, f + 8 + 4 * tt, f + 11 + 4 * tt, c, c + 15))
    vm = {0: 9 + PF2, 1: 9 + PF2, 2: 6, 3: 6, 4: 6, 5: 6, 6: 1}
    a("s_waitcnt vmcnt(%d)" % vm[0])
    stamp(a, 3)
    a("s_barrier")
    stamp(a, 4)
    reads(0)
    for g in range(28):
        i, j = g >> 2, g & 3
        if j == 3 and i < 6:
            a("s_waitcnt vmcnt(%d) lgkmcnt(0)" % vm[i + 1])
            a("s_barrier")
            reads(g + 1)
            mfmas(g)
        elif g == 27:
            a("s_waitcnt lgkmcnt(0)")
            mfmas(g)
        else:
            reads(g + 1)
            a("s_waitcnt lgkmcnt(6)")
            mfmas(g)
            if i + 2 <= 6:
                issue_part(i + 2, (2, 0, 1)[j])
            if g == 20:
                k1_prefetch_wd(a)
    stamp(a, 5)
    c0 = -2.0 * 0.7978845608028654 * LOG2E
    c1 = c0 * 0.044715
    a("v_mov_b32 v64, %s" % fl(c0))
    a("""
    s_lshl_b32 s84, s74, 3
    s_lshl_b32 s85, s82, 1
    s_add_u32 s84, s84, s85
    s_mul_i32 s84, s84, 112
    s_lshl_b32 s85, s75, 1
    s_add_u32 s85, s85, s83
    s_lshl_b32 s85, s85, 1
    s_add_u32 s84, s84, s85
    s_lshl_b32 s84, s84, 10
    s_add_u32 s85, s84, 114688
    v_lshlrev_b32 v65, 4, v1
    """)
    for tt in range(2):
        G = ACC + 16 * tt; U = ACC + 32 + 16 * tt
        for r0 in range(0, 16, 4):
            T = [66 + k for k in range(4)]
            Y = [70 + k for k in range(4)]
            for k in range(4): a("v_mul_f32 v%d, v%d, v%d" % (T[k], G + r0 + k, G + r0 + k))
            for k in range(4): a("v_fmamk_f32 v%d, v%d, %s, v64" % (T[k], T[k], fl(c1)))
            for k in range(4): a("v_mul_f32 v%d, v%d, v%d" % (T[k], T[k], G + r0 + k))
            for k in range(4): a("v_exp_f32 v%d, v%d" % (T[k], T[k]))
            for k in range(4): a("v_mul_f32 v%d, v%d, v%d" % (Y[k], G + r0 + k, U + r0 + k))
            for k in range(4): a("v_add_f32 v%d, 1.0, v%d" % (T[k], T[k]))
            for k in range(4): a("v_rcp_f32 v%d, v%d" % (T[k], T[k]))
            for k in range(4): a("v_mul_f32 v%d, v%d, v%d" % (Y[k], Y[k], T[k]))
            o = 76 + 8 * tt + r0 // 2
            a("v_cvt_pk_bf16_f32 v%d, v%d, v%d" % (o, Y[0], Y[1]))
            a("v_cvt_pk_bf16_f32 v%d, v%d, v%d" % (o + 1, Y[2], Y[3]))
        o = 76 + 8 * tt
        so = "s84" if tt == 0 else "s85"
        a("buffer_store_dwordx4 v[%d:%d], v65, s[20:23], %s offen%s" % (o, o + 3, so, HST))
        a("buffer_store_dwordx4 v[%d:%d], v65, s[20:23], %s offen offset:1024%s" % (o + 4, o + 7, so, HST))
    stamp(a, 6)
    stamp_flush(a, 0, 7)
    a("s_endpgm")

def gen_k1_dft(a):
    a("""
    s_sub_u32 s72, s2, 224
    s_lshr_b32 s73, s72, 3
    s_and_b32 s75, s73, 1
    s_lshr_b32 s73, s73, 1
    s_and_b32 s74, s72, 1
    s_lshl_b32 s74, s74, 3
    s_add_u32 s74, s74, s73
    s_lshr_b32 s73, s72, 1
    s_and_b32 s73, s73, 3
    s_lshl_b32 s73, s73, 1
    s_add_u32 s74, s74, s73
    """)
    a("""
    s_lshl_b32 s76, s74, 2
    s_lshr_b32 s77, s36, 1
    s_add_u32 s76, s76, s77
    s_mul_i32 s76, s76, 896
    s_and_b32 s77, s36, 1
    s_mul_i32 s77, s77, 917504
    s_add_u32 s76, s76, s77
    v_lshrrev_b32 v8, 3, v1
    v_mul_u32_u24 v9, 57344, v8
    v_add_u32 v9, s76, v9
    v_lshrrev_b32 v10, 4, v1
    v_and_b32 v11, 7, v1
    v_xor_b32 v12, v11, v10
    v_xor_b32 v13, 4, v12
    v_lshl_add_u32 v4, v12, 4, v9
    v_lshl_add_u32 v5, v13, 4, v9
    v_add_u32 v5, 458752, v5
    s_lshl_b32 s78, s36, 11
    """)
    def issue_stage(ks):
        a("s_mov_b32 s80, %d" % (ks * 128))
        for q in range(2):
            a("s_add_u32 m0, s78, %d" % (ks * 16384 + q * 1024))
            a("buffer_load_dwordx4 v%d, s[8:11], s80 offen lds" % (4 + q))
    issue_stage(0)
    if "pf1" in EXP:
        k1_prefetch_in(a, "C")
    k1_side_loads(a)
    a("""
    v_and_b32 v8, 31, v1
    v_lshlrev_b32 v8, 7, v8
    v_lshrrev_b32 v9, 5, v1
    v_lshrrev_b32 v10, 1, v1
    v_and_b32 v10, 7, v10
    """)
    for j in range(4):
        a("v_add_u32 v11, %d, v9" % (2 * j))
        a("v_xor_b32 v11, v11, v10")
        a("v_lshl_add_u32 v%d, v11, 4, v8" % (14 + j))
        a("v_add_u32 v%d, 65536, v%d" % (18 + j, 14 + j))
    a("""
    s_lshl_b32 s82, s75, 7
    s_lshl_b32 s83, s36, 4
    s_add_u32 s82, s82, s83
    v_and_b32 v8, 15, v1
    v_add_u32 v22, s82, v8
    v_cvt_f32_u32 v23, v22
    v_mul_f32 v23, %s, v23
    v_lshrrev_b32 v9, 5, v1
    v_lshlrev_b32 v9, 3, v9
    v_cvt_f32_u32 v9, v9
    v_lshrrev_b32 v10, 4, v1
    v_and_b32 v10, 1, v10
    v_cvt_f32_u32 v11, v10
    v_mul_f32 v11, 0.5, v11
    v_mul_f32 v11, 0.5, v11
    v_fma_f32 v24, v9, v23, v11
    """ % fl(1.0 / 448.0))
    a("""
    v_and_b32 v9, 31, v1
    v_and_b32 v11, 15, v9
    v_lshrrev_b32 v9, 4, v9
    v_lshl_add_u32 v9, v11, 1, v9
    v_mul_u32_u24 v25, 272, v9
    v_lshrrev_b32 v9, 5, v1
    v_lshl_add_u32 v25, v9, 4, v25
    s_mul_i32 s85, s36, 8704
    v_add_u32 v25, s85, v25
    v_lshrrev_b32 v9, 4, v1
    v_mul_u32_u24 v26, 272, v9
    v_lshl_add_u32 v26, v8, 4, v26
    v_add_u32 v26, s85, v26
    v_lshlrev_b32 v27, 12, v9
    v_lshl_add_u32 v27, v8, 4, v27
    s_lshl_b32 s84, s82, 13
    s_lshl_b32 s85, s74, 8
    s_add_u32 s84, s84, s85
    s_add_u32 s84, s84, 0x%x
    v_cos_f32 v28, v23
    v_add_f32 v28, v28, v28
    """ % PF_OFF)
    ACC = 160
    for r in range(64):
        a("v_mov_b32 v%d, 0" % (ACC + r))
    k1_gf_compute(a)
    issue_stage(1)
    issue_stage(2)
    stamp(a, 1)
    a("s_waitcnt vmcnt(4)")
    stamp(a, 2)
    k1_side_compute_store(a)
    FR = [32, 48]
    FF = [64, 68]
    def reads(g):
        st, j = g >> 2, g & 3
        f = FR[g & 1]
        for tt in range(4):
            off = st * 16384 + tt * 4096
            base = 14 + j
            if off >= 65536:
                off -= 65536; base = 18 + j
            a("ds_read_b128 v[%d:%d], v%d offset:%d" % (f + 4 * tt, f + 4 * tt + 3, base, off))
    def fgen(g):
        f = FF[g & 1]
        for i in range(2):
            a("v_fmamk_f32 v%d, v23, %s, v24" % (72 + i, fl(float(16 * g + i))))
        for i in range(2):
            a("v_cos_f32 v%d, v%d" % (72 + i, 72 + i))
        for i in range(2, 8):
            a("v_fma_f32 v%d, v28, v%d, -v%d" % (72 + i, 71 + i, 70 + i))
        for i in range(4):
            a("v_cvt_pk_bf16_f32 v%d, v%d, v%d" % (f + i, 72 + 2 * i, 73 + 2 * i))
    def mfmas(g):
        f = FR[g & 1]; ff = FF[g & 1]
        for tt in range(4):
            c = ACC + 16 * tt
            a("v_mfma_f32_32x32x16_bf16 v[%d:%d], v[%d:%d], v[%d:%d], v[%d:%d]" %
              (c, c + 15, f + 4 * tt, f + 4 * tt + 3, ff, ff + 3, c, c + 15))
    vm = {0: 7, 1: 7, 2: 7, 3: 4, 4: 4, 5: 3, 6: 1}
    fgen(0)
    a("s_waitcnt vmcnt(%d)" % vm[0])
    stamp(a, 3)
    a("s_barrier")
    stamp(a, 4)
    reads(0)
    for g in range(28):
        i, j = g >> 2, g & 3
        if j == 3 and i < 6:
            a("s_waitcnt vmcnt(%d)" % vm[i + 1])
            a("s_barrier")
            reads(g + 1)
            a("s_waitcnt lgkmcnt(4)")
            mfmas(g)
            fgen(g + 1)
        elif g == 27:
            a("s_waitcnt lgkmcnt(0)")
            mfmas(g)
        else:
            reads(g + 1)
            a("s_waitcnt lgkmcnt(4)")
            mfmas(g)
            fgen(g + 1)
            if j == 0 and i + 3 <= 6:
                issue_stage(i + 3)
            if g == 17:
                k1_prefetch_wd(a)
    stamp(a, 5)
    for tt in range(4):
        c = ACC + 16 * tt
        o = 32 + 8 * tt
        for k in range(8):
            a("v_cvt_pk_bf16_f32 v%d, v%d, v%d" % (o + k, c + 2 * k, c + 2 * k + 1))
        a("ds_write_b128 v25, v[%d:%d] offset:%d" % (o, o + 3, tt * 64))
        a("ds_write_b128 v25, v[%d:%d] offset:%d" % (o + 4, o + 7, tt * 64 + 32))
    a("s_waitcnt lgkmcnt(0)")
    for m in range(8):
        a("ds_read_b128 v[%d:%d], v26 offset:%d" % (64 + 4 * m, 67 + 4 * m, m * 4 * 272))
    for m in range(8):
        a("s_waitcnt lgkmcnt(%d)" % (7 - m))
        a("s_add_u32 s85, s84, %d" % (m * 16384))
        a("buffer_store_dwordx4 v[%d:%d], v27, s[20:23], s85 offen sc0 sc1" % (64 + 4 * m, 67 + 4 * m))
    stamp(a, 6)
    stamp_flush(a, 0, 7)
    a("s_endpgm")


def mfma(a, c, A, B):
    a("v_mfma_f32_32x32x16_bf16 v[%d:%d], v[%d:%d], v[%d:%d], v[%d:%d]" % (c, c + 15, A, A + 3, B, B + 3, c, c + 15))

def gen_k2(a):
    a.raw(kernel_header(K2))
    a("""
    s_cmp_ge_u32 s2, 225
    s_cbranch_scc1 K2_END
    s_load_dwordx2 s[4:5], s[0:1], 48
    s_load_dwordx2 s[60:61], s[0:1], 64
    s_load_dwordx2 s[6:7], s[0:1], 80
    v_and_b32 v1, 63, v0
    v_lshrrev_b32 v2, 6, v0
    v_readfirstlane_b32 s36, v2
    s_waitcnt lgkmcnt(0)
    """)
    srd(a, 8, 4, 1605632)
    srd(a, 20, 6, WS_SIZE)
    srd(a, 12, 60, 1835008)
    stamp(a, 0)
    tile_map_64(a)
    a("""
    s_lshl_b32 s78, s36, 14
    s_cmp_eq_u32 s36, 7
    s_cbranch_scc1 K2_FFT
    s_cmp_ge_u32 s2, 224
    s_cbranch_scc1 K2_END
    """)
    gen_k2_down(a)
    a("K2_FFT:")
    gen_k2_fft(a)
    a("K2_END:")
    a("s_endpgm")

def tile_map_64(a):
    a("""
    s_and_b32 s72, s2, 7
    s_lshl_b32 s72, s72, 2
    s_lshr_b32 s73, s2, 3
    s_and_b32 s74, s73, 3
    s_add_u32 s74, s74, s72
    s_lshr_b32 s75, s2, 5
    """)

def tr_addr(a, dst, rowmul_h, chunk_sgpr):
    sh = {4: 2, 8: 3}[rowmul_h]
    a("""
    v_and_b32 v8, 15, v1
    v_lshrrev_b32 v9, 2, v8
    v_lshrrev_b32 v10, 5, v1
    v_lshl_add_u32 v9, v10, %d, v9
    v_lshlrev_b32 v9, 7, v9
    v_lshrrev_b32 v10, 4, v1
    v_and_b32 v10, 1, v10
    v_lshlrev_b32 v10, 1, v10
    v_lshrrev_b32 v11, 1, v8
    v_and_b32 v11, 1, v11
    v_add_u32 v10, v10, v11
    v_add_u32 v10, %s, v10
    v_lshrrev_b32 v11, 3, v8
    v_lshlrev_b32 v11, 2, v11
    v_xor_b32 v10, v10, v11
    v_lshl_add_u32 v9, v10, 4, v9
    v_and_b32 v11, 1, v8
    v_lshl_add_u32 v%d, v11, 3, v9
    """ % (sh, chunk_sgpr, dst))

def k2_tail_prep(a):
    a("""
    v_lshlrev_b32 v7, 4, v1
    v_and_b32 v12, 31, v1
    v_lshrrev_b32 v13, 5, v1
    s_lshl_b32 s80, s75, 6
    v_add_u32 v208, s80, v12
    v_cvt_f32_u32 v208, v208
    v_mul_f32 v208, %s, v208
    v_add_f32 v209, %s, v208
    s_and_b32 s80, s36, 3
    s_lshl_b32 s80, s80, 6
    v_lshlrev_b32 v210, 3, v13
    v_add_u32 v210, s80, v210
    v_cvt_f32_u32 v210, v210
    s_cmp_ge_u32 s36, 4
    s_cselect_b32 s81, 0x3e800000, 0
    s_cselect_b32 s82, 0, 0.5
    v_mov_b32 v211, s81
    v_mov_b32 v212, s82
    v_fma_f32 v213, v210, v208, v211
    v_fma_f32 v214, v210, v209, v211
    v_cos_f32 v215, v208
    v_cos_f32 v216, v209
    v_add_f32 v215, v215, v215
    v_add_f32 v216, v216, v216
    v_mov_b32 v217, %s
    v_mov_b32 v218, 0
    v_mov_b32 v219, 1.0
    """ % (fl(1.0 / 448.0), fl(32.0 / 448.0), fl(224.0)))
    F = 220; SCL = 228
    for m in range(4):
        idx = [0] if m == 0 else list(range(8)) if m >= 2 else []
        for i in idx:
            a("v_add_f32 v236, %s, v210" % fl(float(16 * m + i)))
            a("v_cmp_lt_f32 vcc, v217, v236")
            a("v_cndmask_b32 v%d, v219, v218, vcc" % (SCL + i))
            a("v_cmp_eq_f32 vcc, v217, v236")
            a("v_cndmask_b32 v%d, v%d, v212, vcc" % (SCL + i, SCL + i))
            a("v_cmp_eq_f32 vcc, 0, v236")
            a("v_cndmask_b32 v%d, v%d, v212, vcc" % (SCL + i, SCL + i))
        for dtl in range(2):
            d = 96 + 4 * (4 * dtl + m)
            for i in range(2):
                a("v_fmamk_f32 v%d, v%d, %s, v%d" % (F + i, 208 + dtl, fl(float(16 * m + i)), 213 + dtl))
            for i in range(2):
                a("v_cos_f32 v%d, v%d" % (F + i, F + i))
            for i in range(2, 8):
                a("v_fma_f32 v%d, v%d, v%d, -v%d" % (F + i, 215 + dtl, F + i - 1, F + i - 2))
            for i in idx:
                a("v_mul_f32 v%d, v%d, v%d" % (F + i, F + i, SCL + i))
            for i in range(4):
                a("v_cvt_pk_bf16_f32 v%d, v%d, v%d" % (d + i, F + 2 * i, F + 2 * i + 1))
    a("""
    s_and_b32 s83, s36, 3
    s_lshl_b32 s83, s83, 6
    v_lshrrev_b32 v8, 3, v1
    v_add_u32 v8, s83, v8
    v_lshrrev_b32 v10, 4, v1
    v_and_b32 v10, 1, v10
    v_lshlrev_b32 v10, 2, v10
    v_and_b32 v11, 7, v1
    v_xor_b32 v10, v11, v10
    v_lshlrev_b32 v10, 4, v10
    s_lshr_b32 s84, s36, 2
    s_mul_i32 s84, s84, %d
    s_lshl_b32 s85, s74, 7
    s_add_u32 s84, s84, s85
    s_add_u32 s84, s84, 0x%x
    v_mov_b32 v15, 224
    s_mov_b32 s85, 0x%x
    """ % (225 * 4096, ZT_OFF, CNT_OFF))
    for b in range(8):
        a("v_add_u32 v9, %d, v8" % (8 * b))
        a("v_min_u32 v9, v9, v15")
        a("v_lshl_add_u32 v%d, v9, 12, v10" % (82 + b))
    tr_addr(a, 90, 8, "0")
    a("v_add_u32 v90, s78, v90")
    a("v_xor_b32 v91, 64, v90")

def k2_gate_load(a):
    a("""
    v_and_b32 v14, 31, v1
    v_lshlrev_b32 v14, 2, v14
    s_lshl_b32 s86, s74, 8
    s_add_u32 s86, s86, 0x%x
    buffer_load_dword v80, v14, s[20:23], s86 offen
    buffer_load_dword v81, v14, s[20:23], s86 offen offset:128
    """ % GATE_OFF)

def k2_gate_fin(a):
    a("""
    v_sub_f32 v92, 1.0, v80
    v_sub_f32 v93, 1.0, v81
    v_mul_f32 v80, %s, v80
    v_mul_f32 v81, %s, v81
    """ % (fl(2.0 / (2048.0 * 448.0)), fl(2.0 / (2048.0 * 448.0))))

NSTEP = 16
DEPTH = int(os.environ.get("DEPTH", "6"))
def gen_k2_down(a):
    a("""
    v_lshrrev_b32 v8, 3, v1
    v_mul_u32_u24 v9, 896, v8
    v_lshrrev_b32 v10, 4, v1
    v_and_b32 v10, 1, v10
    v_lshlrev_b32 v10, 2, v10
    v_and_b32 v11, 7, v1
    v_xor_b32 v10, v11, v10
    v_lshl_add_u32 v3, v10, 4, v9
    s_lshl_b32 s76, s75, 7
    s_mul_i32 s77, s36, 229376
    s_add_u32 s76, s76, s77
    v_add_u32 v3, s76, v3
    s_mul_i32 s76, s74, 224
    s_lshl_b32 s77, s36, 4
    s_add_u32 s76, s76, s77
    s_lshl_b32 s76, s76, 10
    v_lshlrev_b32 v4, 4, v1
    v_add_u32 v4, s76, v4
    """)
    HF = 16; AF = [128, 136]; ACC = 144
    def hreg(s):
        return HF + 8 * (s % 8)
    def issue(s):
        slot = s % 8
        a("s_mov_b32 s80, %d" % (s * 14336))
        a("s_mov_b32 s81, %d" % (s * 14336 + 7168))
        a("s_mov_b32 s82, %d" % (H_OFF + s * 1024))
        a("s_mov_b32 s83, %d" % (H_OFF + s * 1024 + 114688))
        a("s_add_u32 m0, s78, %d" % (slot * 2048))
        a("buffer_load_dwordx4 v3, s[8:11], s80 offen lds")
        a("s_add_u32 m0, s78, %d" % (slot * 2048 + 1024))
        a("buffer_load_dwordx4 v3, s[8:11], s81 offen lds")
        a("buffer_load_dwordx4 v[%d:%d], v4, s[20:23], s82 offen" % (hreg(s), hreg(s) + 3))
        a("buffer_load_dwordx4 v[%d:%d], v4, s[20:23], s83 offen" % (hreg(s) + 4, hreg(s) + 7))
    if "nobar" not in EXP:
        a("s_barrier")
    if "nodown" in EXP:
        a("s_branch K2_TAIL")
    k2_gate_load(a)
    for s in range(DEPTH):
        issue(s)
    tr_addr(a, 5, 4, "0")
    a("v_add_u32 v5, s78, v5")
    a("v_xor_b32 v6, 64, v5")
    k2_tail_prep(a)
    issued = [DEPTH]
    def wait_step(k):
        a("s_waitcnt vmcnt(%d)" % (4 * (issued[0] - k - 1)))
    def reads(s):
        f = AF[s & 1]; slot = s % 8
        for dtl in range(2):
            for rd in range(2):
                a("ds_read_b64_tr_b16 v[%d:%d], v%d offset:%d" % (f + 4 * dtl + 2 * rd, f + 4 * dtl + 2 * rd + 1, 5 + dtl,
                                                               slot * 2048 + rd * 1024))
    stamp(a, 1)
    wait_step(0)
    stamp(a, 2)
    k2_gate_fin(a)
    reads(0)
    for s in range(NSTEP):
        if s + 1 < NSTEP:
            wait_step(s + 1); reads(s + 1)
            a("s_waitcnt lgkmcnt(4)")
        else:
            a("s_waitcnt lgkmcnt(0)")
        f = AF[s & 1]
        for dtl in range(2):
            for tt in range(2):
                c = ACC + 16 * (2 * dtl + tt); A = f + 4 * dtl; B = hreg(s) + 4 * tt
                a("v_mfma_f32_32x32x16_bf16 v[%d:%d], v[%d:%d], v[%d:%d], %s" %
                  (c, c + 15, A, A + 3, B, B + 3, "0" if s == 0 else "v[%d:%d]" % (c, c + 15)))
        if s + DEPTH < NSTEP:
            issue(s + DEPTH); issued[0] += 1
    a("K2_TAIL:")
    stamp(a, 3)
    a("""
    s_cmp_lg_u32 s36, 7
    s_cbranch_scc1 K2_GO
    v_lshlrev_b32 v228, 8, v1
    K2_POLL:
    buffer_load_dword v224, v228, s[20:23], s85 offen sc1
    buffer_load_dword v225, v228, s[20:23], s85 offen offset:64 sc1
    buffer_load_dword v226, v228, s[20:23], s85 offen offset:128 sc1
    buffer_load_dword v227, v228, s[20:23], s85 offen offset:192 sc1
    s_waitcnt vmcnt(0)
    v_and_b32 v224, v224, v225
    v_and_b32 v226, v226, v227
    v_and_b32 v224, v224, v226
    v_cmp_eq_u32 vcc, 1, v224
    s_cmp_eq_u64 vcc, exec
    s_cbranch_scc1 K2_GO
    s_sleep 4
    s_branch K2_POLL
    K2_GO:
    """)
    for t4 in range(4):
        for r in range(16):
            a("v_mul_f32 v%d, v%d, v%d" % (ACC + 16 * t4 + r, ACC + 16 * t4 + r, 92 + (t4 & 1)))
    a("s_barrier")
    stamp(a, 4)
    for b in range(8):
        a("s_add_u32 m0, s78, %d" % (b * 1024))
        a("buffer_load_dwordx4 v%d, s[20:23], s84 offen sc0 sc1 lds" % (82 + b))
    AA = 16
    ZF = [128, 132, 136, 140, 208, 212, 216, 220]
    for m in range(4):
        a("s_waitcnt vmcnt(%d)" % (6 - 2 * m))
        for tt in range(2):
            f = ZF[2 * m + tt]
            for rd in range(2):
                a("ds_read_b64_tr_b16 v[%d:%d], v%d offset:%d" % (f + 2 * rd, f + 2 * rd + 1, 90 + tt, (16 * m + 4 * rd) * 128))
    for m in range(4):
        a("s_waitcnt lgkmcnt(%d)" % (12 - 4 * m))
        for dtl in range(2):
            for tt in range(2):
                c = AA + 16 * (2 * dtl + tt); A = 96 + 4 * (4 * dtl + m); B = ZF[2 * m + tt]
                a("v_mfma_f32_32x32x16_bf16 v[%d:%d], v[%d:%d], v[%d:%d], %s" %
                  (c, c + 15, A, A + 3, B, B + 3, "0" if m == 0 else "v[%d:%d]" % (c, c + 15)))
    for t4 in range(4):
        for r in range(16):
            a("v_fma_f32 v%d, v%d, v%d, v%d" % (ACC + 16 * t4 + r, AA + 16 * t4 + r, 80 + (t4 & 1), ACC + 16 * t4 + r))
    stamp(a, 5)
    a("""
    v_add_u32 v8, s78, v7
    s_lshl_b32 s79, s36, 11
    v_add_u32 v9, s79, v7
    v_add_u32 v10, 65536, v9
    """)
    for p in range(8):
        for q in range(2):
            c = ACC + 8 * p + 4 * q
            a("ds_write_b128 v8, v[%d:%d] offset:%d" % (c, c + 3, p * 2048 + q * 1024))
    a("s_waitcnt lgkmcnt(0)")
    a("s_barrier")
    for w2 in range(8):
        for q in range(2):
            d = 16 + 8 * w2 + 4 * q
            a("ds_read_b128 v[%d:%d], v%d offset:%d" % (d, d + 3, 9 if w2 < 4 else 10, (w2 & 3) * 16384 + q * 1024))
    a("""
    s_lshr_b32 s80, s36, 1
    s_and_b32 s81, s80, 1
    s_lshr_b32 s80, s80, 1
    s_lshl_b32 s82, s74, 1
    s_add_u32 s82, s82, s81
    s_mul_i32 s82, s82, 896
    s_lshl_b32 s83, s75, 1
    s_add_u32 s83, s83, s80
    s_lshl_b32 s83, s83, 6
    s_add_u32 s82, s82, s83
    s_and_b32 s83, s36, 1
    s_lshl_b32 s83, s83, 5
    s_add_u32 s82, s82, s83
    v_mul_u32_u24 v11, 57344, v12
    v_lshl_add_u32 v11, v13, 4, v11
    """)
    for w2 in range(1, 8):
        a("s_waitcnt lgkmcnt(%d)" % (2 * (7 - w2)))
        for k in range(8):
            a("v_add_f32 v%d, v%d, v%d" % (16 + k, 16 + k, 16 + 8 * w2 + k))
    for k in range(4):
        a("v_cvt_pk_bf16_f32 v%d, v%d, v%d" % (80 + k, 16 + 2 * k, 17 + 2 * k))
    a("v_permlane32_swap_b32 v80, v82")
    a("v_permlane32_swap_b32 v81, v83")
    a("buffer_store_dwordx4 v[80:83], v11, s[12:15], s82 offen")
    stamp(a, 6)
    stamp_flush(a, 1, 7)
    a("s_endpgm")

def gen_k2_fft(a):
    if "noprio" not in EXP:
        a("s_setprio 3")
    a("""
    s_lshl_b32 s73, s2, 13
    s_add_u32 s66, s73, 0x%x
    s_add_u32 s67, s66, 4096
    s_add_u32 s76, s73, 0x%x
    v_and_b32 v3, 31, v1
    v_lshrrev_b32 v4, 5, v1
    v_lshlrev_b32 v2, 6, v3
    v_lshl_add_u32 v2, v4, 4, v2
    v_lshlrev_b32 v5, 8, v3
    v_lshl_add_u32 v5, v4, 4, v5
    v_lshlrev_b32 v7, 4, v1
    v_add_u32 v6, s78, v7
    """ % (PF_OFF, WT_OFF))
    CR, CI, NCI = 16, 24, 32
    ER, EI = 40, 72
    WV = 104
    ACC = 136
    FA, FB, FC = 200, 216, 232
    PR, PI = 200, 216
    for c, base, so in ((0, PR, "s66"), (1, PI, "s67")):
        for T in range(2):
            for j in range(2):
                d = base + 4 * (2 * T + j)
                a("buffer_load_dwordx4 v[%d:%d], v2, s[20:23], %s offen offset:%d" % (d, d + 3, so, T * 2048 + j * 32))
    for e in range(6):
        if e % 4 == 0:
            a("s_mov_b32 s79, 0x%x" % (TB_OFF + e * 1024))
        a("buffer_load_dwordx4 v[%d:%d], v7, s[20:23], s79 offen offset:%d" % (16 + 4 * e, 19 + 4 * e, (e % 4) * 1024))
    def tw_dma(c):
        a("s_add_u32 m0, s78, %d" % (c * 1024))
        a("s_mov_b32 s79, 0x%x" % (TB_OFF + (22 + c) * 1024))
        a("buffer_load_dwordx4 v7, s[20:23], s79 offen lds")
    for e in range(6, 22):
        if (e - 6) % 4 == 0:
            a("s_mov_b32 s79, 0x%x" % (TB_OFF + e * 1024))
        a("buffer_load_dwordx4 v[%d:%d], v7, s[20:23], s79 offen offset:%d" % (16 + 4 * e, 19 + 4 * e, ((e - 6) % 4) * 1024))
    for U in range(2):
        for q in range(4):
            d = WV + 4 * (4 * U + q)
            a("buffer_load_dwordx4 v[%d:%d], v5, s[20:23], s76 offen offset:%d" % (d, d + 3, U * 128 + q * 32))
    if "nobar" not in EXP:
        a("s_barrier")
    if "nofft" in EXP:
        a("s_waitcnt vmcnt(0)")
        a("s_branch K2_FFT_SKIP")
    stamp(a, 1)
    RE = [ACC, ACC + 16]; IM = [ACC + 32, ACC + 48]
    first = set()
    def MF(c, A, B):
        z = c not in first
        first.add(c)
        return "v_mfma_f32_32x32x16_bf16 v[%d:%d], v[%d:%d], v[%d:%d], %s" % (
            c, c + 15, A, A + 3, B, B + 3, "0" if z else "v[%d:%d]" % (c, c + 15))
    def merge(M, V, lead=1):
        n = len(M)
        k = 0
        for idx, m in enumerate(M):
            a(m)
            if idx + 1 < lead:
                continue
            tgt = (len(V) * (idx + 2 - lead)) // (n + 1 - lead)
            while k < tgt:
                a(V[k]); k += 1
        while k < len(V):
            a(V[k]); k += 1
    TWB = [248, 8]
    def twiddle(tbl, T, sign):
        L = []
        th, ph = (14, 15) if (tbl == 0 or T == 0) else (5, 6)
        for q in range(4):
            t = 248
            for k in range(4):
                kk = (32 * T if tbl == 0 else 0) + 8 * q + k
                L.append("v_fmamk_f32 v%d, v%d, %s, v%d" % (t + k, th, fl(float(kk)), ph))
            for k in range(4):
                L.append("v_sin_f32 v%d, v%d" % (t + 4 + k, t + k))
            for k in range(4):
                L.append("v_cos_f32 v%d, v%d" % (t + k, t + k))
            for k in range(4):
                xr, xi = RE[T] + 4 * q + k, IM[T] + 4 * q + k
                c, s = t + k, t + 4 + k
                L.append("v_mul_f32 v7, v%d, v%d" % (xr, s))
                L.append("v_mul_f32 v%d, v%d, v%d" % (s, xi, s))
                if sign < 0:
                    L.append("v_fma_f32 v%d, v%d, v%d, v%d" % (xr, xr, c, s))
                    L.append("v_fma_f32 v%d, v%d, v%d, -v7" % (xi, xi, c))
                else:
                    L.append("v_fma_f32 v%d, v%d, v%d, -v%d" % (xr, xr, c, s))
                    L.append("v_fma_f32 v%d, v%d, v%d, v7" % (xi, xi, c))
        return L
    def pack(dst, tiles, T, neg=False):
        n = "-" if neg else ""
        return ["v_cvt_pk_bf16_f32 v%d, %sv%d, %sv%d" % (dst + 8 * T + k, n, tiles[T] + 2 * k, n, tiles[T] + 2 * k + 1)
                for k in range(8)]
    def wmul(U):
        L = []
        for r in range(16):
            w = WV + 16 * U + r
            xr, xi = RE[U] + r, IM[U] + r
            L += ["v_lshlrev_b32 v10, 16, v%d" % w, "v_and_b32 v11, 0xffff0000, v%d" % w,
                  "v_mul_f32 v12, v%d, v11" % xr, "v_mul_f32 v13, v%d, v11" % xi,
                  "v_fma_f32 v%d, v%d, v10, -v13" % (xr, xr), "v_fma_f32 v%d, v%d, v10, v12" % (xi, xi)]
        return L
    def stepA(T):
        M = []
        for j in range(2):
            M += [MF(RE[T], PR + 4 * (2 * T + j), CR + 4 * j), MF(IM[T], PR + 4 * (2 * T + j), CI + 4 * j)]
        for j in range(2):
            M += [MF(RE[T], PI + 4 * (2 * T + j), NCI + 4 * j), MF(IM[T], PI + 4 * (2 * T + j), CR + 4 * j)]
        return M
    def stepB(U, jjs):
        M = []
        for jj in jjs:
            e = 4 * (4 * U + jj)
            M += [MF(RE[U], ER + e, FA + 4 * jj), MF(IM[U], EI + e, FA + 4 * jj),
                  MF(RE[U], EI + e, FC + 4 * jj), MF(IM[U], ER + e, FB + 4 * jj)]
        return M
    def stepC(V, jjs):
        M = []
        for jj in jjs:
            e = 4 * (4 * V + jj)
            M += [MF(RE[V], FA + 4 * jj, ER + e), MF(IM[V], FB + 4 * jj, ER + e),
                  MF(RE[V], FB + 4 * jj, EI + e), MF(IM[V], FC + 4 * jj, EI + e)]
        return M
    def stepD(V):
        M = []
        for j in range(2):
            M += [MF(RE[V], CR + 4 * j, FA + 4 * (2 * V + j)), MF(IM[V], CR + 4 * j, FB + 4 * (2 * V + j))]
        for j in range(2):
            M += [MF(RE[V], CI + 4 * j, FB + 4 * (2 * V + j)), MF(IM[V], NCI + 4 * j, FA + 4 * (2 * V + j))]
        return M
    def zout(V):
        L = []
        for c, tiles, so, o in ((0, RE, "s77", WV + 16 * V), (1, IM, "s79", WV + 16 * V + 8)):
            t = tiles[V]
            pos = {0: 0, 2: 2, 1: 4, 3: 6}
            for q in range(4):
                L.append("v_cvt_pk_bf16_f32 v%d, v%d, v%d" % (o + pos[q], t + 4 * q, t + 4 * q + 1))
                L.append("v_cvt_pk_bf16_f32 v%d, v%d, v%d" % (o + pos[q] + 1, t + 4 * q + 2, t + 4 * q + 3))
            for x, y in ((0, 2), (1, 3), (4, 6), (5, 7)):
                L.append("v_permlane32_swap_b32 v%d, v%d" % (o + x, o + y))
            L.append("buffer_store_dwordx4 v[%d:%d], v2, s[20:23], %s offen offset:%d sc0 sc1" % (o, o + 3, so, V * 2048))
            L.append("buffer_store_dwordx4 v[%d:%d], v2, s[20:23], %s offen offset:%d sc0 sc1" % (o + 4, o + 7, so, V * 2048 + 16))
        return L
    a("""
    v_cvt_f32_u32 v14, v3
    v_mul_f32 v14, %s, v14
    v_lshlrev_b32 v15, 2, v4
    v_cvt_f32_u32 v15, v15
    v_add_f32 v5, %s, v14
    v_mul_f32 v6, v15, v5
    v_mul_f32 v15, v15, v14
    """ % (fl(1.0 / 2048), fl(32.0 / 2048)))
    a("s_waitcnt vmcnt(24)")
    stamp(a, 2)
    merge(stepA(0), [])
    a("""
    v_lshlrev_b32 v2, 6, v3
    v_lshl_add_u32 v2, v4, 5, v2
    s_lshl_b32 s77, s2, 12
    s_add_u32 s77, s77, 0x%x
    """ % ZT_OFF)
    merge(stepA(1), twiddle(0, 0, -1) + pack(FA, RE, 0) + pack(FB, IM, 0) + pack(FC, IM, 0, neg=True), lead=2)
    if "fftprof" in EXP: stamp(a, 3)
    a("s_add_u32 s79, s77, %d" % (225 * 4096))
    a("s_waitcnt vmcnt(8)")
    first.clear()
    merge(stepB(0, (0, 1)), twiddle(0, 1, -1) + pack(FA, RE, 1) + pack(FB, IM, 1) + pack(FC, IM, 1, neg=True))
    merge(stepB(0, (2, 3)), [])
    a("s_waitcnt vmcnt(0)")
    merge(stepB(1, (0, 1, 2, 3)), wmul(0), lead=2)
    if "fftprof" in EXP: stamp(a, 4)
    for x in pack(FA, RE, 0) + pack(FB, IM, 0) + pack(FC, RE, 0, neg=True):
        a(x)
    first.clear()
    merge(stepC(0, (0, 1)), wmul(1) + pack(FA, RE, 1) + pack(FB, IM, 1) + pack(FC, RE, 1, neg=True))
    merge(stepC(0, (2, 3)), [])
    merge(stepC(1, (0, 1, 2, 3)), twiddle(1, 0, +1), lead=2)
    if "fftprof" in EXP: stamp(a, 5)
    for x in pack(FA, RE, 0) + pack(FB, IM, 0):
        a(x)
    first.clear()
    merge(stepD(0), twiddle(1, 1, +1) + pack(FA, RE, 1) + pack(FB, IM, 1))
    merge(stepD(1), zout(0), lead=2)
    for x in zout(1):
        a(x)
    if "fftprof" in EXP:
        stamp(a, 6)
        stamp_flush(a, 1, 7)
        a("s_endpgm")
    a("K2_FFT_SKIP:")
    a("""
    s_lshl_b32 s77, s2, 6
    s_add_u32 s77, s77, 0x%x
    v_mov_b32 v8, s77
    v_mov_b32 v9, 1
    s_waitcnt vmcnt(0)
    s_mov_b64 exec, 1
    buffer_store_dword v9, v8, s[20:23], 0 offen sc0 sc1
    s_mov_b64 exec, -1
    s_setprio 0
    s_cmp_ge_u32 s2, 224
    s_cbranch_scc1 K2_END
    """ % CNT_OFF)
    k2_gate_load(a)
    k2_tail_prep(a)
    for r in range(64):
        a("v_mov_b32 v%d, 0" % (144 + r))
    a("s_waitcnt vmcnt(0)")
    k2_gate_fin(a)
    a("s_branch K2_TAIL")

def main(out):
    a = Asm()
    hdr = open("gated_mix__spectral_gfnet__glu_gated_geglu__prompt.s.ref").read().split("\n")
    for l in hdr:
        if l.startswith(";") and "@launch" not in l and "Override" not in l and "grid=ceil" not in l:
            a.raw(l)
    a.raw("; @launch kernel=%s grid=(256,1,1) block=(512,1,1) lds=147456" % K1)
    a.raw("; @launch kernel=%s grid=(225,1,1) block=(512,1,1) lds=147456" % K2)
    a.raw('.amdgcn_target "amdgcn-amd-amdhsa--gfx950"\n.text')
    gen_k1(a)
    gen_k2(a)
    a.raw('.section .rodata,"a"')
    a.raw(kernel_desc(K1, 224, 102))
    a.raw(kernel_desc(K2, 256, 102))
    open(out, "w").write(a.finalize())
    print("nops inserted", a.nops_inserted)

if __name__ == "__main__":
    if len(sys.argv) > 2 and sys.argv[2] == "stamp":
        STAMP = True
    main(sys.argv[1] if len(sys.argv) > 1 else "k.s")
```

```python
import sys, struct, math
sys.path.insert(0, "tools")
from asmgen import *

def f2u(x):
    return struct.unpack("<I", struct.pack("<f", x))[0]
def fl(x):
    return "0x%08x" % f2u(x)

H_OFF    = 0x0000000
PF_OFF   = 0x0700000
WT_OFF   = 0x0900000
GATE_OFF = 0x0B00000
GF_OFF   = 0x0B10000
TB_OFF   = 0x0B80000
CNT_OFF  = 0x0B85800
ZT_OFF   = 0x0C00000
BQ_OFF   = 0x0E00000
WS_SIZE  = 0x1100000

K1 = "k1_gateup_dft_kernel"
K2 = "k2_down_fft_kernel"
K3 = "k3_idft_mix_kernel"

LOG2E = 1.4426950408889634

STAMP = False
import os
EXP = os.environ.get("EXP", "")
PFG = int(os.environ.get("PFG", "20"))
HST = "" if "hplain" in EXP else " sc0 sc1"
STAMP_OFF = 0x1000000
def stamp(a, i):
    if not STAMP: return
    a("s_memrealtime s[98:99]")
    a("s_waitcnt lgkmcnt(0)")
    a("s_mov_b32 s%d, s98" % (90 + i))
    if i in (4, 5) and "clk" in EXP:
        a("s_memtime s[98:99]")
        a("s_waitcnt lgkmcnt(0)")
        a("s_mov_b32 s%d, s98" % (96 + i))
    if i in (2, 3) and "ck2" in EXP:
        a("s_memtime s[98:99]")
        a("s_waitcnt lgkmcnt(0)")
        a("s_mov_b32 s%d, s98" % (98 + i))
def stamp_flush(a, k, n):
    if not STAMP: return
    a("s_waitcnt vmcnt(0)")
    stamp(a, n)
    a("v_mov_b32 v2, 0")
    for i in range(n + 1):
        a("v_writelane_b32 v2, s%d, %d" % (90 + i, i))
    if ("clk" in EXP and k == 0) or ("ck2" in EXP and k == 1):
        a("v_writelane_b32 v2, s100, 8")
        a("v_writelane_b32 v2, s101, 9")
    a("s_lshl_b32 s98, s2, 3")
    a("s_add_u32 s98, s98, s36")
    a("s_lshl_b32 s98, s98, 6")
    a("s_add_u32 s98, s98, 0x%x" % (STAMP_OFF + k * 0x20000))
    a("v_lshlrev_b32 v3, 2, v1")
    a("s_mov_b64 exec, 0xffff")
    a("buffer_store_dword v2, v3, s[20:23], s98 offen")

class Vm:
    def __init__(self, a):
        self.a = a; self.ops = []
    def add(self, tag, n=1):
        self.ops += [tag] * n
    def cnt(self, tag):
        last = max(i for i, t in enumerate(self.ops) if t == tag)
        return len(self.ops) - 1 - last
    def wait(self, tag, extra=""):
        n = self.cnt(tag)
        assert n <= 63
        self.a("s_waitcnt vmcnt(%d)%s" % (n, extra))

def srd(a, base, ptr, nbytes):
    a("s_mov_b32 s%d, s%d" % (base, ptr))
    a("s_mov_b32 s%d, s%d" % (base + 1, ptr + 1))
    a("s_mov_b32 s%d, %d" % (base + 2, nbytes))
    a("s_mov_b32 s%d, 0x00020000" % (base + 3))

sX, sWg, sWu, sWS, sWr, sWi, sGw = 8, 12, 16, 20, 24, 28, 32
sWave = 36

def k1_side_loads(a):
    a("""
    s_and_b32 s40, s2, 31
    s_lshr_b32 s41, s2, 5
    s_lshl_b32 s41, s41, 3
    v_and_b32 v116, 255, v0
    v_lshrrev_b32 v117, 8, v0
    v_lshlrev_b32 v117, 2, v117
    v_add_u32 v117, s41, v117
    v_lshlrev_b32 v118, 5, v117
    v_add_u32 v118, s40, v118
    v_mul_u32_u24 v118, 450, v118
    v_lshl_add_u32 v118, v116, 1, v118
    s_mov_b32 s42, 14400
    s_mov_b32 s43, 28800
    s_mov_b32 s44, 43200
    buffer_load_ushort v100, v118, s[24:27], 0 offen
    buffer_load_ushort v101, v118, s[24:27], s42 offen
    buffer_load_ushort v102, v118, s[24:27], s43 offen
    buffer_load_ushort v103, v118, s[24:27], s44 offen
    buffer_load_ushort v104, v118, s[28:31], 0 offen
    buffer_load_ushort v105, v118, s[28:31], s42 offen
    buffer_load_ushort v106, v118, s[28:31], s43 offen
    buffer_load_ushort v107, v118, s[28:31], s44 offen
    """)
    a("""
    v_lshlrev_b32 v118, 5, v116
    v_add_u32 v118, s40, v118
    v_lshl_add_u32 v118, v118, 6, v117
    v_lshlrev_b32 v118, 2, v118
    v_add_u32 v118, 0x%x, v118
    """ % WT_OFF)
    a("""
    s_lshl_b32 s45, s2, 3
    s_add_u32 s45, s45, s36
    s_mul_i32 s46, s45, 896
    v_lshlrev_b32 v119, 4, v1
    v_add_u32 v120, s46, v119
    v_mov_b32 v121, 0x7ffffff0
    v_cmp_gt_u32 vcc, 56, v1
    v_cndmask_b32 v120, v121, v120, vcc
    buffer_load_dwordx4 v[108:111], v120, s[8:11], 0 offen
    buffer_load_dwordx4 v[112:115], v119, s[32:35], 0 offen
    """)

_uid = [0]
def k1_gf_compute(a):
    _uid[0] += 1
    L = "TJ%d" % _uid[0]
    a("""
    s_mov_b32 s53, 0x7ffffff0
    s_cmp_ge_u32 s45, 38
    s_cbranch_scc1 %s_E
    s_lshl_b32 s53, s45, 10
    s_add_u32 s53, s53, 0x%x
    s_cmp_ge_u32 s45, 22
    s_cbranch_scc1 %s_F
    v_and_b32 v129, 31, v1
    v_lshrrev_b32 v130, 5, v1
    s_mov_b32 s48, s45
    s_cmp_ge_u32 s48, 6
    s_cbranch_scc1 %s_X
    s_mov_b32 s52, %s
    s_mov_b32 s47, 0
    s_and_b32 s49, s48, 1
    s_lshl_b32 s49, s49, 4
    s_lshr_b32 s50, s48, 1
    s_cmp_eq_u32 s50, 1
    s_cselect_b32 s51, 0x3e800000, 0
    s_cmp_eq_u32 s50, 2
    s_cselect_b32 s50, 0xbe800000, s51
    s_branch %s_C
    %s_X:
    s_sub_u32 s48, s48, 6
    s_mov_b32 s52, %s
    s_lshr_b32 s47, s48, 2
    s_and_b32 s47, s47, 1
    s_lshl_b32 s47, s47, 5
    s_and_b32 s49, s48, 3
    s_lshl_b32 s49, s49, 4
    s_cmp_ge_u32 s48, 8
    s_cselect_b32 s50, 0x3e800000, 0
    %s_C:
    v_add_u32 v129, s47, v129
    v_cvt_f32_u32 v129, v129
    v_mul_f32 v129, s52, v129
    v_lshlrev_b32 v130, 2, v130
    v_add_u32 v130, s49, v130
    v_cvt_f32_u32 v130, v130
    v_mov_b32 v131, s50
    """ % (L, TB_OFF, L, L, fl(1.0 / 32), L, L, fl(1.0 / 64), L))
    for i in range(8):
        t = 136 + i
        a("v_add_f32 v144, %s, v130" % fl(float(8 * (i >> 2) + (i & 3))))
        a("v_fma_f32 v%d, v144, v129, v131" % t)
        a("v_cos_f32 v%d, v%d" % (t, t))
    for i in range(4):
        a("v_cvt_pk_bf16_f32 v%d, v%d, v%d" % (124 + i, 136 + 2 * i, 137 + 2 * i))
    a("s_branch %s_E" % L)
    a("%s_F:" % L)
    a("""
    s_sub_u32 s48, s45, 22
    s_lshl_b32 s48, s48, 4
    v_lshrrev_b32 v144, 2, v1
    v_add_u32 v144, s48, v144
    v_cmp_lt_u32 vcc, 224, v144
    v_cndmask_b32 v124, 0, 1, vcc
    """)
    a("%s_E:" % L)
    a("""
    v_lshlrev_b32 v128, 4, v1
    v_add_u32 v128, s53, v128
    """)

def k1_side_compute_store(a):
    for q in range(4):
        a("v_lshl_or_b32 v%d, v%d, 16, v%d" % (100 + q, 104 + q, 100 + q))
    a("v_mov_b32 v136, 0")
    for q in range(4):
        a("v_lshlrev_b32 v137, 16, v%d" % (108 + q))
        a("v_lshlrev_b32 v138, 16, v%d" % (112 + q))
        a("v_fmac_f32 v136, v137, v138")
        a("v_and_b32 v137, 0xffff0000, v%d" % (108 + q))
        a("v_and_b32 v138, 0xffff0000, v%d" % (112 + q))
        a("v_fmac_f32 v136, v137, v138")
    for sh in (1, 2, 4, 8):
        a("v_add_f32_dpp v136, v136, v136 row_shr:%d row_mask:0xf bank_mask:0xf bound_ctrl:0" % sh)
    a("""
    v_readlane_b32 s54, v136, 15
    v_readlane_b32 s55, v136, 31
    v_readlane_b32 s56, v136, 47
    v_readlane_b32 s57, v136, 63
    v_mov_b32 v136, s54
    v_add_f32 v136, s55, v136
    v_add_f32 v136, s56, v136
    v_add_f32 v136, s57, v136
    v_mul_f32 v136, %s, v136
    v_exp_f32 v136, v136
    v_add_f32 v136, 1.0, v136
    v_rcp_f32 v136, v136
    s_and_b32 s54, s45, 63
    s_lshl_b32 s54, s54, 5
    s_lshr_b32 s55, s45, 6
    s_add_u32 s54, s54, s55
    s_lshl_b32 s54, s54, 2
    s_add_u32 s54, s54, 0x%x
    v_mov_b32 v137, s54
    buffer_store_dwordx4 v[124:127], v128, s[20:23], 0 offen sc0 sc1
    v_cmp_gt_u32 vcc, 225, v116
    s_and_saveexec_b64 s[58:59], vcc
    buffer_store_dwordx4 v[100:103], v118, s[20:23], 0 offen sc0 sc1
    s_mov_b64 exec, 1
    buffer_store_dword v136, v137, s[20:23], 0 offen
    s_mov_b64 exec, s[58:59]
    """ % (fl(-LOG2E), GATE_OFF))

def k1_prefetch_wd(a):
    a("""
    s_lshr_b32 s86, s2, 3
    s_lshl_b32 s86, s86, 3
    s_add_u32 s86, s86, s36
    s_mul_i32 s86, s86, 6272
    v_lshlrev_b32 v146, 7, v1
    buffer_load_dword v147, v146, s[64:67], s86 offen
    """)

def k1_prefetch_in(a, L):
    a("""
    s_lshr_b32 s40, s2, 3
    s_lshl_b32 s40, s40, 3
    s_add_u32 s40, s40, s36
    s_min_u32 s40, s40, 209
    s_mul_i32 s41, s40, 9363
    s_lshr_b32 s41, s41, 16
    s_mul_i32 s42, s41, 7
    s_sub_u32 s42, s40, s42
    s_lshl_b32 s42, s42, 7
    s_and_b32 s43, s2, 7
    s_cmp_ge_u32 s41, 16
    s_cbranch_scc1 K1_PFW%(L)s
    s_and_b32 s44, s43, 1
    s_lshl_b32 s44, s44, 5
    s_lshl_b32 s45, s41, 1
    s_add_u32 s44, s44, s45
    s_mul_i32 s44, s44, 896
    s_add_u32 s44, s44, s42
    v_and_b32 v146, 31, v1
    v_mul_u32_u24 v146, 57344, v146
    v_lshrrev_b32 v147, 5, v1
    v_mul_u32_u24 v147, 896, v147
    v_add_u32 v146, v146, v147
    buffer_load_dword v148, v146, s[8:11], s44 offen
    s_branch K1_PFE%(L)s
    K1_PFW%(L)s:
    s_lshr_b32 s44, s43, 1
    s_mul_i32 s44, s44, 896
    s_add_u32 s44, s44, s42
    v_mul_u32_u24 v146, 3584, v1
    s_cmp_ge_u32 s41, 23
    s_cbranch_scc1 K1_PFU%(L)s
    s_sub_u32 s45, s41, 16
    s_mul_i32 s45, s45, 229376
    s_add_u32 s44, s44, s45
    buffer_load_dword v148, v146, s[12:15], s44 offen
    s_branch K1_PFE%(L)s
    K1_PFU%(L)s:
    s_sub_u32 s45, s41, 23
    s_mul_i32 s45, s45, 229376
    s_add_u32 s44, s44, s45
    buffer_load_dword v148, v146, s[16:19], s44 offen
    K1_PFE%(L)s:
    """ % {"L": L})

def gen_k1(a):
    a.raw(kernel_header(K1))
    a("""
    s_cmp_ge_u32 s2, 256
    s_cbranch_scc1 K1_END
    s_load_dwordx2 s[4:5], s[0:1], 0
    s_load_dwordx4 s[60:63], s[0:1], 8
    s_load_dwordx4 s[64:67], s[0:1], 32
    s_load_dwordx2 s[68:69], s[0:1], 56
    s_load_dwordx2 s[70:71], s[0:1], 80
    s_load_dwordx2 s[6:7], s[0:1], 48
    v_and_b32 v1, 63, v0
    v_lshrrev_b32 v2, 6, v0
    v_readfirstlane_b32 s36, v2
    s_waitcnt lgkmcnt(0)
    """)
    srd(a, sX, 4, 1835008)
    srd(a, sWr, 60, 921600)
    srd(a, sWi, 62, 921600)
    srd(a, sWg, 64, 1605632)
    srd(a, sWu, 66, 1605632)
    srd(a, sGw, 68, 896)
    srd(a, sWS, 70, WS_SIZE)
    srd(a, 64, 6, 1605632)
    stamp(a, 0)
    if "pf0" in EXP:
        k1_prefetch_in(a, "A")
    a("""
    s_cmp_ge_u32 s2, 224
    s_cbranch_scc1 K1_DFT
    """)
    gen_k1_gateup(a)
    a("K1_DFT:")
    gen_k1_dft(a)
    a("K1_END:")
    a("s_endpgm")

def gen_k1_gateup(a):
    a("""
    s_and_b32 s72, s2, 7
    s_lshr_b32 s73, s2, 3
    s_and_b32 s74, s72, 1
    s_lshl_b32 s74, s74, 2
    s_and_b32 s75, s73, 3
    s_add_u32 s74, s74, s75
    s_lshr_b32 s75, s72, 1
    s_mul_i32 s75, s75, 7
    s_lshr_b32 s76, s73, 2
    s_add_u32 s75, s75, s76
    """)
    if "maprow" in EXP:
        a("s_and_b32 s74, s2, 7")
        a("s_lshr_b32 s75, s2, 3")
    a("""
    s_lshl_b32 s76, s74, 3
    s_add_u32 s76, s76, s36
    s_mul_i32 s76, s76, 896
    v_lshrrev_b32 v8, 3, v1
    v_mul_u32_u24 v9, 57344, v8
    v_add_u32 v9, s76, v9
    v_lshrrev_b32 v10, 4, v1
    v_and_b32 v11, 7, v1
    v_xor_b32 v12, v11, v10
    v_xor_b32 v13, 4, v12
    v_lshl_add_u32 v4, v12, 4, v9
    v_lshl_add_u32 v5, v13, 4, v9
    v_add_u32 v5, 458752, v5
    v_add_u32 v6, 917504, v4
    v_add_u32 v7, 917504, v5
    """)
    a("""
    s_lshl_b32 s77, s36, 3
    v_add_u32 v9, s77, v8
    v_mul_u32_u24 v9, 3584, v9
    v_and_b32 v10, 1, v10
    v_lshlrev_b32 v10, 2, v10
    v_xor_b32 v10, v11, v10
    v_lshl_add_u32 v3, v10, 4, v9
    s_lshl_b32 s77, s75, 7
    v_add_u32 v3, s77, v3
    s_lshl_b32 s78, s36, 12
    s_lshl_b32 s79, s36, 10
    """)
    def issue_part(ks, part):
        sb = (ks % 3) * 49152
        if part < 2:
            a("s_mov_b32 s80, %d" % (ks * 128))
            for q in (2 * part, 2 * part + 1):
                a("s_add_u32 m0, s78, %d" % (sb + q * 1024))
                a("buffer_load_dwordx4 v%d, s[8:11], s80 offen lds" % (4 + q))
        else:
            a("s_mov_b32 s81, %d" % (ks * 229376))
            a("s_add_u32 m0, s79, %d" % (sb + 32768))
            a("buffer_load_dwordx4 v3, s[12:15], s81 offen lds")
            a("s_add_u32 m0, s79, %d" % (sb + 40960))
            a("buffer_load_dwordx4 v3, s[16:19], s81 offen lds")
        vmt.add("S%d" % ks, 2)
    vmt = Vm(a)
    for part in (2, 0, 1):
        issue_part(0, part)
    a("""
    s_lshr_b32 s82, s36, 1
    s_and_b32 s83, s36, 1
    s_lshl_b32 s84, s82, 13
    v_and_b32 v8, 31, v1
    v_lshlrev_b32 v8, 7, v8
    v_add_u32 v8, s84, v8
    v_lshrrev_b32 v9, 5, v1
    v_lshrrev_b32 v10, 1, v1
    v_and_b32 v10, 7, v10
    """)
    for j in range(4):
        a("v_add_u32 v11, %d, v9" % (2 * j))
        a("v_xor_b32 v11, v11, v10")
        a("v_lshl_add_u32 v%d, v11, 4, v8" % (14 + j))
        a("v_add_u32 v%d, 49152, v%d" % (18 + j, 14 + j))
        a("v_add_u32 v%d, 98304, v%d" % (22 + j, 14 + j))
    a("""
    v_and_b32 v8, 15, v1
    v_lshrrev_b32 v9, 2, v8
    v_lshrrev_b32 v10, 5, v1
    v_lshl_add_u32 v9, v10, 3, v9
    v_lshlrev_b32 v9, 7, v9
    v_lshrrev_b32 v10, 4, v1
    v_and_b32 v10, 1, v10
    v_lshlrev_b32 v10, 1, v10
    v_lshrrev_b32 v11, 1, v8
    v_and_b32 v11, 1, v11
    v_add_u32 v10, v10, v11
    s_lshl_b32 s84, s83, 2
    v_add_u32 v10, s84, v10
    v_lshrrev_b32 v11, 3, v8
    v_lshlrev_b32 v11, 2, v11
    v_xor_b32 v10, v10, v11
    v_lshl_add_u32 v9, v10, 4, v9
    v_and_b32 v11, 1, v8
    v_lshl_add_u32 v26, v11, 3, v9
    v_add_u32 v27, 49152, v26
    v_add_u32 v28, 98304, v26
    """)
    ACC = 160
    for part in (2, 0, 1):
        issue_part(1, part)
    k1_side_loads(a); vmt.add("SL", 10)
    k1_gf_compute(a)
    stamp(a, 1)
    FR = [32, 48]
    def reads(g):
        st, j = (g >> 2) % 3, g & 3
        f = FR[g & 1]
        for u in range(2):
            for rd in range(2):
                a("ds_read_b64_tr_b16 v[%d:%d], v%d offset:%d" % (f + 4 * u + 2 * rd, f + 4 * u + 2 * rd + 1, 26 + st,
                                                               32768 + 8192 * u + (16 * j + 4 * rd) * 128))
        for tt in range(2):
            a("ds_read_b128 v[%d:%d], v%d offset:%d" % (f + 8 + 4 * tt, f + 11 + 4 * tt, 14 + 4 * st + j, tt * 4096))
    def mfmas(g):
        f = FR[g & 1]
        if "nomfma" in EXP: return
        for u in range(2):
            for tt in range(2):
                c = ACC + 32 * u + 16 * tt
                a("v_mfma_f32_32x32x16_bf16 v[%d:%d], v[%d:%d], v[%d:%d], %s" %
                  (c, c + 15, f + 4 * u, f + 4 * u + 3, f + 8 + 4 * tt, f + 11 + 4 * tt, "0" if g == 0 else "v[%d:%d]" % (c, c + 15)))
    vmt.wait("S0")
    stamp(a, 3)
    a("s_barrier")
    stamp(a, 4)
    reads(0)
    for g in range(28):
        i, j = g >> 2, g & 3
        if j == 3 and i < 6:
            vmt.wait("S%d" % (i + 1), " lgkmcnt(0)")
            a("s_barrier")
            reads(g + 1)
            mfmas(g)
        elif g == 27:
            a("s_waitcnt lgkmcnt(0)")
            mfmas(g)
        else:
            reads(g + 1)
            a("s_waitcnt lgkmcnt(6)")
            mfmas(g)
            if g == 8:
                k1_side_compute_store(a); vmt.add("ST", 3)
            if i + 2 <= 6:
                if "early" in EXP:
                    if j == 0:
                        for part in (2, 0, 1):
                            issue_part(i + 2, part)
                else:
                    issue_part(i + 2, (2, 0, 1)[j])
            if g == PFG:
                k1_prefetch_wd(a); vmt.add("PF")
    stamp(a, 5)
    c0 = -2.0 * 0.7978845608028654 * LOG2E
    c1 = c0 * 0.044715
    a("v_mov_b32 v64, %s" % fl(c0))
    a("""
    s_lshl_b32 s84, s74, 3
    s_lshl_b32 s85, s82, 1
    s_add_u32 s84, s84, s85
    s_mul_i32 s84, s84, 112
    s_lshl_b32 s85, s75, 1
    s_add_u32 s85, s85, s83
    s_lshl_b32 s85, s85, 1
    s_add_u32 s84, s84, s85
    s_lshl_b32 s84, s84, 10
    s_add_u32 s85, s84, 114688
    v_lshlrev_b32 v65, 4, v1
    """)
    for tt in range(2):
        G = ACC + 16 * tt; U = ACC + 32 + 16 * tt
        for r0 in range(0, 16, 4):
            T = [66 + k for k in range(4)]
            Y = [70 + k for k in range(4)]
            for k in range(4): a("v_mul_f32 v%d, v%d, v%d" % (T[k], G + r0 + k, G + r0 + k))
            for k in range(4): a("v_fmamk_f32 v%d, v%d, %s, v64" % (T[k], T[k], fl(c1)))
            for k in range(4): a("v_mul_f32 v%d, v%d, v%d" % (T[k], T[k], G + r0 + k))
            for k in range(4): a("v_exp_f32 v%d, v%d" % (T[k], T[k]))
            for k in range(4): a("v_mul_f32 v%d, v%d, v%d" % (Y[k], G + r0 + k, U + r0 + k))
            for k in range(4): a("v_add_f32 v%d, 1.0, v%d" % (T[k], T[k]))
            for k in range(4): a("v_rcp_f32 v%d, v%d" % (T[k], T[k]))
            for k in range(4): a("v_mul_f32 v%d, v%d, v%d" % (Y[k], Y[k], T[k]))
            o = 76 + 8 * tt + r0 // 2
            a("v_cvt_pk_bf16_f32 v%d, v%d, v%d" % (o, Y[0], Y[1]))
            a("v_cvt_pk_bf16_f32 v%d, v%d, v%d" % (o + 1, Y[2], Y[3]))
        o = 76 + 8 * tt
        so = "s84" if tt == 0 else "s85"
        a("buffer_store_dwordx4 v[%d:%d], v65, s[20:23], %s offen%s" % (o, o + 3, so, HST))
        a("buffer_store_dwordx4 v[%d:%d], v65, s[20:23], %s offen offset:1024%s" % (o + 4, o + 7, so, HST))
    stamp(a, 6)
    stamp_flush(a, 0, 7)
    a("s_endpgm")

def gen_k1_dft(a):
    a("""
    s_sub_u32 s72, s2, 224
    s_lshr_b32 s73, s72, 3
    s_and_b32 s75, s73, 1
    s_lshr_b32 s73, s73, 1
    s_and_b32 s74, s72, 1
    s_lshl_b32 s74, s74, 3
    s_add_u32 s74, s74, s73
    s_lshr_b32 s73, s72, 1
    s_and_b32 s73, s73, 3
    s_lshl_b32 s73, s73, 1
    s_add_u32 s74, s74, s73
    """)
    a("""
    s_lshl_b32 s76, s74, 2
    s_lshr_b32 s77, s36, 1
    s_add_u32 s76, s76, s77
    s_mul_i32 s76, s76, 896
    s_and_b32 s77, s36, 1
    s_mul_i32 s77, s77, 917504
    s_add_u32 s76, s76, s77
    v_lshrrev_b32 v8, 3, v1
    v_mul_u32_u24 v9, 57344, v8
    v_add_u32 v9, s76, v9
    v_lshrrev_b32 v10, 4, v1
    v_and_b32 v11, 7, v1
    v_xor_b32 v12, v11, v10
    v_xor_b32 v13, 4, v12
    v_lshl_add_u32 v4, v12, 4, v9
    v_lshl_add_u32 v5, v13, 4, v9
    v_add_u32 v5, 458752, v5
    s_lshl_b32 s78, s36, 11
    """)
    def issue_stage(ks):
        a("s_mov_b32 s80, %d" % (ks * 128))
        for q in range(2):
            a("s_add_u32 m0, s78, %d" % (ks * 16384 + q * 1024))
            a("buffer_load_dwordx4 v%d, s[8:11], s80 offen lds" % (4 + q))
    issue_stage(0)
    if "pf1" in EXP:
        k1_prefetch_in(a, "C")
    k1_side_loads(a)
    a("""
    v_and_b32 v8, 31, v1
    v_lshlrev_b32 v8, 7, v8
    v_lshrrev_b32 v9, 5, v1
    v_lshrrev_b32 v10, 1, v1
    v_and_b32 v10, 7, v10
    """)
    for j in range(4):
        a("v_add_u32 v11, %d, v9" % (2 * j))
        a("v_xor_b32 v11, v11, v10")
        a("v_lshl_add_u32 v%d, v11, 4, v8" % (14 + j))
        a("v_add_u32 v%d, 65536, v%d" % (18 + j, 14 + j))
    a("""
    s_lshl_b32 s82, s75, 7
    s_lshl_b32 s83, s36, 4
    s_add_u32 s82, s82, s83
    v_and_b32 v8, 15, v1
    v_add_u32 v22, s82, v8
    v_cvt_f32_u32 v23, v22
    v_mul_f32 v23, %s, v23
    v_lshrrev_b32 v9, 5, v1
    v_lshlrev_b32 v9, 3, v9
    v_cvt_f32_u32 v9, v9
    v_lshrrev_b32 v10, 4, v1
    v_and_b32 v10, 1, v10
    v_cvt_f32_u32 v11, v10
    v_mul_f32 v11, 0.5, v11
    v_mul_f32 v11, 0.5, v11
    v_fma_f32 v24, v9, v23, v11
    """ % fl(1.0 / 448.0))
    a("""
    v_and_b32 v9, 31, v1
    v_and_b32 v11, 15, v9
    v_lshrrev_b32 v9, 4, v9
    v_lshl_add_u32 v9, v11, 1, v9
    v_mul_u32_u24 v25, 272, v9
    v_lshrrev_b32 v9, 5, v1
    v_lshl_add_u32 v25, v9, 4, v25
    s_mul_i32 s85, s36, 8704
    v_add_u32 v25, s85, v25
    v_lshrrev_b32 v9, 4, v1
    v_mul_u32_u24 v26, 272, v9
    v_lshl_add_u32 v26, v8, 4, v26
    v_add_u32 v26, s85, v26
    v_lshlrev_b32 v27, 12, v9
    v_lshl_add_u32 v27, v8, 4, v27
    s_lshl_b32 s84, s82, 13
    s_lshl_b32 s85, s74, 8
    s_add_u32 s84, s84, s85
    s_add_u32 s84, s84, 0x%x
    v_cos_f32 v28, v23
    v_add_f32 v28, v28, v28
    """ % PF_OFF)
    ACC = 160
    for r in range(64):
        a("v_mov_b32 v%d, 0" % (ACC + r))
    k1_gf_compute(a)
    issue_stage(1)
    issue_stage(2)
    stamp(a, 1)
    a("s_waitcnt vmcnt(4)")
    stamp(a, 2)
    k1_side_compute_store(a)
    FR = [32, 48]
    FF = [64, 68]
    def reads(g):
        st, j = g >> 2, g & 3
        f = FR[g & 1]
        for tt in range(4):
            off = st * 16384 + tt * 4096
            base = 14 + j
            if off >= 65536:
                off -= 65536; base = 18 + j
            a("ds_read_b128 v[%d:%d], v%d offset:%d" % (f + 4 * tt, f + 4 * tt + 3, base, off))
    def fgen(g):
        f = FF[g & 1]
        for i in range(2):
            a("v_fmamk_f32 v%d, v23, %s, v24" % (72 + i, fl(float(16 * g + i))))
        for i in range(2):
            a("v_cos_f32 v%d, v%d" % (72 + i, 72 + i))
        for i in range(2, 8):
            a("v_fma_f32 v%d, v28, v%d, -v%d" % (72 + i, 71 + i, 70 + i))
        for i in range(4):
            a("v_cvt_pk_bf16_f32 v%d, v%d, v%d" % (f + i, 72 + 2 * i, 73 + 2 * i))
    def mfmas(g):
        f = FR[g & 1]; ff = FF[g & 1]
        for tt in range(4):
            c = ACC + 16 * tt
            a("v_mfma_f32_32x32x16_bf16 v[%d:%d], v[%d:%d], v[%d:%d], v[%d:%d]" %
              (c, c + 15, f + 4 * tt, f + 4 * tt + 3, ff, ff + 3, c, c + 15))
    vm = {0: 7, 1: 7, 2: 7, 3: 4, 4: 4, 5: 3, 6: 1}
    fgen(0)
    a("s_waitcnt vmcnt(%d)" % vm[0])
    stamp(a, 3)
    a("s_barrier")
    stamp(a, 4)
    reads(0)
    for g in range(28):
        i, j = g >> 2, g & 3
        if j == 3 and i < 6:
            a("s_waitcnt vmcnt(%d)" % vm[i + 1])
            a("s_barrier")
            reads(g + 1)
            a("s_waitcnt lgkmcnt(4)")
            mfmas(g)
            fgen(g + 1)
        elif g == 27:
            a("s_waitcnt lgkmcnt(0)")
            mfmas(g)
        else:
            reads(g + 1)
            a("s_waitcnt lgkmcnt(4)")
            mfmas(g)
            fgen(g + 1)
            if j == 0 and i + 3 <= 6:
                issue_stage(i + 3)
            if g == 17:
                k1_prefetch_wd(a)
    stamp(a, 5)
    for tt in range(4):
        c = ACC + 16 * tt
        o = 32 + 8 * tt
        for k in range(8):
            a("v_cvt_pk_bf16_f32 v%d, v%d, v%d" % (o + k, c + 2 * k, c + 2 * k + 1))
        a("ds_write_b128 v25, v[%d:%d] offset:%d" % (o, o + 3, tt * 64))
        a("ds_write_b128 v25, v[%d:%d] offset:%d" % (o + 4, o + 7, tt * 64 + 32))
    a("s_waitcnt lgkmcnt(0)")
    for m in range(8):
        a("ds_read_b128 v[%d:%d], v26 offset:%d" % (64 + 4 * m, 67 + 4 * m, m * 4 * 272))
    for m in range(8):
        a("s_waitcnt lgkmcnt(%d)" % (7 - m))
        a("s_add_u32 s85, s84, %d" % (m * 16384))
        a("buffer_store_dwordx4 v[%d:%d], v27, s[20:23], s85 offen sc0 sc1" % (64 + 4 * m, 67 + 4 * m))
    stamp(a, 6)
    stamp_flush(a, 0, 7)
    a("s_endpgm")


def mfma(a, c, A, B):
    a("v_mfma_f32_32x32x16_bf16 v[%d:%d], v[%d:%d], v[%d:%d], v[%d:%d]" % (c, c + 15, A, A + 3, B, B + 3, c, c + 15))

def gen_k2(a):
    a.raw(kernel_header(K2))
    a("""
    s_cmp_ge_u32 s2, 225
    s_cbranch_scc1 K2_END
    s_load_dwordx2 s[4:5], s[0:1], 48
    s_load_dwordx2 s[60:61], s[0:1], 64
    s_load_dwordx2 s[6:7], s[0:1], 80
    v_and_b32 v1, 63, v0
    v_lshrrev_b32 v2, 6, v0
    v_readfirstlane_b32 s36, v2
    s_waitcnt lgkmcnt(0)
    """)
    srd(a, 8, 4, 1605632)
    srd(a, 20, 6, WS_SIZE)
    srd(a, 12, 60, 1835008)
    stamp(a, 0)
    tile_map_64(a)
    a("""
    s_lshl_b32 s78, s36, 14
    s_cmp_eq_u32 s36, 7
    s_cbranch_scc1 K2_FFT
    s_cmp_ge_u32 s2, 224
    s_cbranch_scc1 K2_END
    """)
    gen_k2_down(a)
    a("K2_FFT:")
    gen_k2_fft(a)
    a("K2_END:")
    a("s_endpgm")

def tile_map_64(a):
    a("""
    s_and_b32 s72, s2, 7
    s_lshl_b32 s72, s72, 2
    s_lshr_b32 s73, s2, 3
    s_and_b32 s74, s73, 3
    s_add_u32 s74, s74, s72
    s_lshr_b32 s75, s2, 5
    """)

def tr_addr(a, dst, rowmul_h, chunk_sgpr):
    sh = {4: 2, 8: 3}[rowmul_h]
    a("""
    v_and_b32 v8, 15, v1
    v_lshrrev_b32 v9, 2, v8
    v_lshrrev_b32 v10, 5, v1
    v_lshl_add_u32 v9, v10, %d, v9
    v_lshlrev_b32 v9, 7, v9
    v_lshrrev_b32 v10, 4, v1
    v_and_b32 v10, 1, v10
    v_lshlrev_b32 v10, 1, v10
    v_lshrrev_b32 v11, 1, v8
    v_and_b32 v11, 1, v11
    v_add_u32 v10, v10, v11
    v_add_u32 v10, %s, v10
    v_lshrrev_b32 v11, 3, v8
    v_lshlrev_b32 v11, 2, v11
    v_xor_b32 v10, v10, v11
    v_lshl_add_u32 v9, v10, 4, v9
    v_and_b32 v11, 1, v8
    v_lshl_add_u32 v%d, v11, 3, v9
    """ % (sh, chunk_sgpr, dst))

def k2_tail_prep(a):
    a("""
    v_lshlrev_b32 v7, 4, v1
    v_and_b32 v12, 31, v1
    v_lshrrev_b32 v13, 5, v1
    s_lshl_b32 s80, s75, 6
    v_add_u32 v208, s80, v12
    v_cvt_f32_u32 v208, v208
    v_mul_f32 v208, %s, v208
    v_add_f32 v209, %s, v208
    s_and_b32 s80, s36, 3
    s_lshl_b32 s80, s80, 6
    v_lshlrev_b32 v210, 3, v13
    v_add_u32 v210, s80, v210
    v_cvt_f32_u32 v210, v210
    s_cmp_ge_u32 s36, 4
    s_cselect_b32 s81, 0x3e800000, 0
    s_cselect_b32 s82, 0, 0.5
    v_mov_b32 v211, s81
    v_mov_b32 v212, s82
    v_fma_f32 v213, v210, v208, v211
    v_fma_f32 v214, v210, v209, v211
    v_cos_f32 v215, v208
    v_cos_f32 v216, v209
    v_add_f32 v215, v215, v215
    v_add_f32 v216, v216, v216
    v_mov_b32 v217, %s
    v_mov_b32 v218, 0
    v_mov_b32 v219, 1.0
    """ % (fl(1.0 / 448.0), fl(32.0 / 448.0), fl(224.0)))
    F = 220; SCL = 228
    for m in range(4):
        idx = [0] if m == 0 else list(range(8)) if m >= 2 else []
        for i in idx:
            a("v_add_f32 v236, %s, v210" % fl(float(16 * m + i)))
            a("v_cmp_lt_f32 vcc, v217, v236")
            a("v_cndmask_b32 v%d, v219, v218, vcc" % (SCL + i))
            a("v_cmp_eq_f32 vcc, v217, v236")
            a("v_cndmask_b32 v%d, v%d, v212, vcc" % (SCL + i, SCL + i))
            a("v_cmp_eq_f32 vcc, 0, v236")
            a("v_cndmask_b32 v%d, v%d, v212, vcc" % (SCL + i, SCL + i))
        for dtl in range(2):
            d = 96 + 4 * (4 * dtl + m)
            for i in range(2):
                a("v_fmamk_f32 v%d, v%d, %s, v%d" % (F + i, 208 + dtl, fl(float(16 * m + i)), 213 + dtl))
            for i in range(2):
                a("v_cos_f32 v%d, v%d" % (F + i, F + i))
            for i in range(2, 8):
                a("v_fma_f32 v%d, v%d, v%d, -v%d" % (F + i, 215 + dtl, F + i - 1, F + i - 2))
            for i in idx:
                a("v_mul_f32 v%d, v%d, v%d" % (F + i, F + i, SCL + i))
            for i in range(4):
                a("v_cvt_pk_bf16_f32 v%d, v%d, v%d" % (d + i, F + 2 * i, F + 2 * i + 1))
    a("""
    s_and_b32 s83, s36, 3
    s_lshl_b32 s83, s83, 6
    v_lshrrev_b32 v8, 3, v1
    v_add_u32 v8, s83, v8
    v_lshrrev_b32 v10, 4, v1
    v_and_b32 v10, 1, v10
    v_lshlrev_b32 v10, 2, v10
    v_and_b32 v11, 7, v1
    v_xor_b32 v10, v11, v10
    v_lshlrev_b32 v10, 4, v10
    s_lshr_b32 s84, s36, 2
    s_mul_i32 s84, s84, %d
    s_lshl_b32 s85, s74, 7
    s_add_u32 s84, s84, s85
    s_add_u32 s84, s84, 0x%x
    v_mov_b32 v15, 224
    s_mov_b32 s85, 0x%x
    """ % (225 * 4096, ZT_OFF, CNT_OFF))
    for b in range(8):
        a("v_add_u32 v9, %d, v8" % (8 * b))
        a("v_min_u32 v9, v9, v15")
        a("v_lshl_add_u32 v%d, v9, 12, v10" % (82 + b))
    tr_addr(a, 90, 8, "0")
    a("v_add_u32 v90, s78, v90")
    a("v_xor_b32 v91, 64, v90")

def k2_gate_load(a):
    a("""
    v_and_b32 v14, 31, v1
    v_lshlrev_b32 v14, 2, v14
    s_lshl_b32 s86, s74, 8
    s_add_u32 s86, s86, 0x%x
    buffer_load_dword v80, v14, s[20:23], s86 offen
    buffer_load_dword v81, v14, s[20:23], s86 offen offset:128
    """ % GATE_OFF)

def k2_gate_fin(a):
    a("""
    v_sub_f32 v92, 1.0, v80
    v_sub_f32 v93, 1.0, v81
    v_mul_f32 v80, %s, v80
    v_mul_f32 v81, %s, v81
    """ % (fl(2.0 / (2048.0 * 448.0)), fl(2.0 / (2048.0 * 448.0))))

NSTEP = 16
DEPTH = int(os.environ.get("DEPTH", "6"))
def gen_k2_down(a):
    a("""
    v_lshrrev_b32 v8, 3, v1
    v_mul_u32_u24 v9, 896, v8
    v_lshrrev_b32 v10, 4, v1
    v_and_b32 v10, 1, v10
    v_lshlrev_b32 v10, 2, v10
    v_and_b32 v11, 7, v1
    v_xor_b32 v10, v11, v10
    v_lshl_add_u32 v3, v10, 4, v9
    s_lshl_b32 s76, s75, 7
    s_mul_i32 s77, s36, 229376
    s_add_u32 s76, s76, s77
    v_add_u32 v3, s76, v3
    s_mul_i32 s76, s74, 224
    s_lshl_b32 s77, s36, 4
    s_add_u32 s76, s76, s77
    s_lshl_b32 s76, s76, 10
    v_lshlrev_b32 v4, 4, v1
    v_add_u32 v4, s76, v4
    """)
    HF = 16; AF = [128, 136]; ACC = 144
    def hreg(s):
        return HF + 8 * (s % 8)
    def issue(s):
        slot = s % 8
        a("s_mov_b32 s80, %d" % (s * 14336))
        a("s_mov_b32 s81, %d" % (s * 14336 + 7168))
        a("s_mov_b32 s82, %d" % (H_OFF + s * 1024))
        a("s_mov_b32 s83, %d" % (H_OFF + s * 1024 + 114688))
        a("s_add_u32 m0, s78, %d" % (slot * 2048))
        a("buffer_load_dwordx4 v3, s[8:11], s80 offen lds")
        a("s_add_u32 m0, s78, %d" % (slot * 2048 + 1024))
        a("buffer_load_dwordx4 v3, s[8:11], s81 offen lds")
        a("buffer_load_dwordx4 v[%d:%d], v4, s[20:23], s82 offen" % (hreg(s), hreg(s) + 3))
        a("buffer_load_dwordx4 v[%d:%d], v4, s[20:23], s83 offen" % (hreg(s) + 4, hreg(s) + 7))
    if "nobar" not in EXP:
        a("s_barrier")
    if "nodown" in EXP:
        a("s_branch K2_TAIL")
    k2_gate_load(a)
    for s in range(DEPTH):
        issue(s)
    tr_addr(a, 5, 4, "0")
    a("v_add_u32 v5, s78, v5")
    a("v_xor_b32 v6, 64, v5")
    issued = [DEPTH]
    def wait_step(k):
        a("s_waitcnt vmcnt(%d)" % (4 * (issued[0] - k - 1)))
    def reads(s):
        f = AF[s & 1]; slot = s % 8
        for dtl in range(2):
            for rd in range(2):
                a("ds_read_b64_tr_b16 v[%d:%d], v%d offset:%d" % (f + 4 * dtl + 2 * rd, f + 4 * dtl + 2 * rd + 1, 5 + dtl,
                                                               slot * 2048 + rd * 1024))
    stamp(a, 1)
    wait_step(0)
    stamp(a, 2)
    k2_gate_fin(a)
    reads(0)
    for s in range(NSTEP):
        if s + 1 < NSTEP:
            wait_step(s + 1); reads(s + 1)
            a("s_waitcnt lgkmcnt(4)")
        else:
            a("s_waitcnt lgkmcnt(0)")
        f = AF[s & 1]
        for dtl in range(2):
            for tt in range(2):
                c = ACC + 16 * (2 * dtl + tt); A = f + 4 * dtl; B = hreg(s) + 4 * tt
                a("v_mfma_f32_32x32x16_bf16 v[%d:%d], v[%d:%d], v[%d:%d], %s" %
                  (c, c + 15, A, A + 3, B, B + 3, "0" if s == 0 else "v[%d:%d]" % (c, c + 15)))
        if s + DEPTH < NSTEP:
            issue(s + DEPTH); issued[0] += 1
        if s + DEPTH == NSTEP - 1:
            k2_tail_prep(a)
    a("K2_TAIL:")
    stamp(a, 3)
    a("""
    s_cmp_lg_u32 s36, 7
    s_cbranch_scc1 K2_GO
    v_lshlrev_b32 v228, 8, v1
    K2_POLL:
    buffer_load_dword v224, v228, s[20:23], s85 offen sc1
    buffer_load_dword v225, v228, s[20:23], s85 offen offset:64 sc1
    buffer_load_dword v226, v228, s[20:23], s85 offen offset:128 sc1
    buffer_load_dword v227, v228, s[20:23], s85 offen offset:192 sc1
    s_waitcnt vmcnt(0)
    v_and_b32 v224, v224, v225
    v_and_b32 v226, v226, v227
    v_and_b32 v224, v224, v226
    v_cmp_eq_u32 vcc, 1, v224
    s_cmp_eq_u64 vcc, exec
    s_cbranch_scc1 K2_GO
    s_sleep 4
    s_branch K2_POLL
    K2_GO:
    """)
    for t4 in range(4):
        for r in range(16):
            a("v_mul_f32 v%d, v%d, v%d" % (ACC + 16 * t4 + r, ACC + 16 * t4 + r, 92 + (t4 & 1)))
    a("s_barrier")
    stamp(a, 4)
    for b in range(8):
        a("s_add_u32 m0, s78, %d" % (b * 1024))
        a("buffer_load_dwordx4 v%d, s[20:23], s84 offen sc0 sc1 lds" % (82 + b))
    AA = 16
    ZF = [128, 132, 136, 140, 208, 212, 216, 220]
    for m in range(4):
        a("s_waitcnt vmcnt(%d)" % (6 - 2 * m))
        for tt in range(2):
            f = ZF[2 * m + tt]
            for rd in range(2):
                a("ds_read_b64_tr_b16 v[%d:%d], v%d offset:%d" % (f + 2 * rd, f + 2 * rd + 1, 90 + tt, (16 * m + 4 * rd) * 128))
    for m in range(4):
        a("s_waitcnt lgkmcnt(%d)" % (12 - 4 * m))
        for dtl in range(2):
            for tt in range(2):
                c = AA + 16 * (2 * dtl + tt); A = 96 + 4 * (4 * dtl + m); B = ZF[2 * m + tt]
                a("v_mfma_f32_32x32x16_bf16 v[%d:%d], v[%d:%d], v[%d:%d], %s" %
                  (c, c + 15, A, A + 3, B, B + 3, "0" if m == 0 else "v[%d:%d]" % (c, c + 15)))
    for t4 in range(4):
        for r in range(16):
            a("v_fma_f32 v%d, v%d, v%d, v%d" % (ACC + 16 * t4 + r, AA + 16 * t4 + r, 80 + (t4 & 1), ACC + 16 * t4 + r))
    stamp(a, 5)
    a("""
    v_add_u32 v8, s78, v7
    s_lshl_b32 s79, s36, 11
    v_add_u32 v9, s79, v7
    v_add_u32 v10, 65536, v9
    """)
    for p in range(8):
        for q in range(2):
            c = ACC + 8 * p + 4 * q
            a("ds_write_b128 v8, v[%d:%d] offset:%d" % (c, c + 3, p * 2048 + q * 1024))
    a("s_waitcnt lgkmcnt(0)")
    a("s_barrier")
    for w2 in range(8):
        for q in range(2):
            d = 16 + 8 * w2 + 4 * q
            a("ds_read_b128 v[%d:%d], v%d offset:%d" % (d, d + 3, 9 if w2 < 4 else 10, (w2 & 3) * 16384 + q * 1024))
    a("""
    s_lshr_b32 s80, s36, 1
    s_and_b32 s81, s80, 1
    s_lshr_b32 s80, s80, 1
    s_lshl_b32 s82, s74, 1
    s_add_u32 s82, s82, s81
    s_mul_i32 s82, s82, 896
    s_lshl_b32 s83, s75, 1
    s_add_u32 s83, s83, s80
    s_lshl_b32 s83, s83, 6
    s_add_u32 s82, s82, s83
    s_and_b32 s83, s36, 1
    s_lshl_b32 s83, s83, 5
    s_add_u32 s82, s82, s83
    v_mul_u32_u24 v11, 57344, v12
    v_lshl_add_u32 v11, v13, 4, v11
    """)
    for w2 in range(1, 8):
        a("s_waitcnt lgkmcnt(%d)" % (2 * (7 - w2)))
        for k in range(8):
            a("v_add_f32 v%d, v%d, v%d" % (16 + k, 16 + k, 16 + 8 * w2 + k))
    for k in range(4):
        a("v_cvt_pk_bf16_f32 v%d, v%d, v%d" % (80 + k, 16 + 2 * k, 17 + 2 * k))
    a("v_permlane32_swap_b32 v80, v82")
    a("v_permlane32_swap_b32 v81, v83")
    a("buffer_store_dwordx4 v[80:83], v11, s[12:15], s82 offen")
    stamp(a, 6)
    stamp_flush(a, 1, 7)
    a("s_endpgm")

def gen_k2_fft(a):
    if "noprio" not in EXP:
        a("s_setprio 3")
    a("""
    s_lshl_b32 s73, s2, 13
    s_add_u32 s66, s73, 0x%x
    s_add_u32 s67, s66, 4096
    s_add_u32 s76, s73, 0x%x
    v_and_b32 v3, 31, v1
    v_lshrrev_b32 v4, 5, v1
    v_lshlrev_b32 v2, 6, v3
    v_lshl_add_u32 v2, v4, 4, v2
    v_lshlrev_b32 v5, 8, v3
    v_lshl_add_u32 v5, v4, 4, v5
    v_lshlrev_b32 v7, 4, v1
    v_add_u32 v6, s78, v7
    """ % (PF_OFF, WT_OFF))
    CR, CI, NCI = 16, 24, 32
    ER, EI = 40, 72
    WV = 104
    ACC = 136
    FA, FB, FC = 200, 216, 232
    PR, PI = 200, 216
    for c, base, so in ((0, PR, "s66"), (1, PI, "s67")):
        for T in range(2):
            for j in range(2):
                d = base + 4 * (2 * T + j)
                a("buffer_load_dwordx4 v[%d:%d], v2, s[20:23], %s offen offset:%d" % (d, d + 3, so, T * 2048 + j * 32))
    for e in range(6):
        if e % 4 == 0:
            a("s_mov_b32 s79, 0x%x" % (TB_OFF + e * 1024))
        a("buffer_load_dwordx4 v[%d:%d], v7, s[20:23], s79 offen offset:%d" % (16 + 4 * e, 19 + 4 * e, (e % 4) * 1024))
    def tw_dma(c):
        a("s_add_u32 m0, s78, %d" % (c * 1024))
        a("s_mov_b32 s79, 0x%x" % (TB_OFF + (22 + c) * 1024))
        a("buffer_load_dwordx4 v7, s[20:23], s79 offen lds")
    for e in range(6, 22):
        if (e - 6) % 4 == 0:
            a("s_mov_b32 s79, 0x%x" % (TB_OFF + e * 1024))
        a("buffer_load_dwordx4 v[%d:%d], v7, s[20:23], s79 offen offset:%d" % (16 + 4 * e, 19 + 4 * e, ((e - 6) % 4) * 1024))
    for U in range(2):
        for q in range(4):
            d = WV + 4 * (4 * U + q)
            a("buffer_load_dwordx4 v[%d:%d], v5, s[20:23], s76 offen offset:%d" % (d, d + 3, U * 128 + q * 32))
    if "nobar" not in EXP:
        a("s_barrier")
    if "nofft" in EXP:
        a("s_waitcnt vmcnt(0)")
        a("s_branch K2_FFT_SKIP")
    stamp(a, 1)
    RE = [ACC, ACC + 16]; IM = [ACC + 32, ACC + 48]
    first = set()
    def MF(c, A, B):
        z = c not in first
        first.add(c)
        return "v_mfma_f32_32x32x16_bf16 v[%d:%d], v[%d:%d], v[%d:%d], %s" % (
            c, c + 15, A, A + 3, B, B + 3, "0" if z else "v[%d:%d]" % (c, c + 15))
    def merge(M, V, lead=1):
        n = len(M)
        k = 0
        for idx, m in enumerate(M):
            a(m)
            if idx + 1 < lead:
                continue
            tgt = (len(V) * (idx + 2 - lead)) // (n + 1 - lead)
            while k < tgt:
                a(V[k]); k += 1
        while k < len(V):
            a(V[k]); k += 1
    TWB = [248, 8]
    def twiddle(tbl, T, sign):
        L = []
        th, ph = (14, 15) if (tbl == 0 or T == 0) else (5, 6)
        for q in range(4):
            t = 248
            for k in range(4):
                kk = (32 * T if tbl == 0 else 0) + 8 * q + k
                L.append("v_fmamk_f32 v%d, v%d, %s, v%d" % (t + k, th, fl(float(kk)), ph))
            for k in range(4):
                L.append("v_sin_f32 v%d, v%d" % (t + 4 + k, t + k))
            for k in range(4):
                L.append("v_cos_f32 v%d, v%d" % (t + k, t + k))
            for k in range(4):
                xr, xi = RE[T] + 4 * q + k, IM[T] + 4 * q + k
                c, s = t + k, t + 4 + k
                L.append("v_mul_f32 v7, v%d, v%d" % (xr, s))
                L.append("v_mul_f32 v%d, v%d, v%d" % (s, xi, s))
                if sign < 0:
                    L.append("v_fma_f32 v%d, v%d, v%d, v%d" % (xr, xr, c, s))
                    L.append("v_fma_f32 v%d, v%d, v%d, -v7" % (xi, xi, c))
                else:
                    L.append("v_fma_f32 v%d, v%d, v%d, -v%d" % (xr, xr, c, s))
                    L.append("v_fma_f32 v%d, v%d, v%d, v7" % (xi, xi, c))
        return L
    def pack(dst, tiles, T, neg=False):
        n = "-" if neg else ""
        return ["v_cvt_pk_bf16_f32 v%d, %sv%d, %sv%d" % (dst + 8 * T + k, n, tiles[T] + 2 * k, n, tiles[T] + 2 * k + 1)
                for k in range(8)]
    def wmul(U):
        L = []
        for r in range(16):
            w = WV + 16 * U + r
            xr, xi = RE[U] + r, IM[U] + r
            L += ["v_lshlrev_b32 v10, 16, v%d" % w, "v_and_b32 v11, 0xffff0000, v%d" % w,
                  "v_mul_f32 v12, v%d, v11" % xr, "v_mul_f32 v13, v%d, v11" % xi,
                  "v_fma_f32 v%d, v%d, v10, -v13" % (xr, xr), "v_fma_f32 v%d, v%d, v10, v12" % (xi, xi)]
        return L
    def stepA(T):
        M = []
        for j in range(2):
            M += [MF(RE[T], PR + 4 * (2 * T + j), CR + 4 * j), MF(IM[T], PR + 4 * (2 * T + j), CI + 4 * j)]
        for j in range(2):
            M += [MF(RE[T], PI + 4 * (2 * T + j), NCI + 4 * j), MF(IM[T], PI + 4 * (2 * T + j), CR + 4 * j)]
        return M
    def stepB(U, jjs):
        M = []
        for jj in jjs:
            e = 4 * (4 * U + jj)
            M += [MF(RE[U], ER + e, FA + 4 * jj), MF(IM[U], EI + e, FA + 4 * jj),
                  MF(RE[U], EI + e, FC + 4 * jj), MF(IM[U], ER + e, FB + 4 * jj)]
        return M
    def stepC(V, jjs):
        M = []
        for jj in jjs:
            e = 4 * (4 * V + jj)
            M += [MF(RE[V], FA + 4 * jj, ER + e), MF(IM[V], FB + 4 * jj, ER + e),
                  MF(RE[V], FB + 4 * jj, EI + e), MF(IM[V], FC + 4 * jj, EI + e)]
        return M
    def stepD(V):
        M = []
        for j in range(2):
            M += [MF(RE[V], CR + 4 * j, FA + 4 * (2 * V + j)), MF(IM[V], CR + 4 * j, FB + 4 * (2 * V + j))]
        for j in range(2):
            M += [MF(RE[V], CI + 4 * j, FB + 4 * (2 * V + j)), MF(IM[V], NCI + 4 * j, FA + 4 * (2 * V + j))]
        return M
    def zout(V):
        L = []
        for c, tiles, so, o in ((0, RE, "s77", WV + 16 * V), (1, IM, "s79", WV + 16 * V + 8)):
            t = tiles[V]
            pos = {0: 0, 2: 2, 1: 4, 3: 6}
            for q in range(4):
                L.append("v_cvt_pk_bf16_f32 v%d, v%d, v%d" % (o + pos[q], t + 4 * q, t + 4 * q + 1))
                L.append("v_cvt_pk_bf16_f32 v%d, v%d, v%d" % (o + pos[q] + 1, t + 4 * q + 2, t + 4 * q + 3))
            for x, y in ((0, 2), (1, 3), (4, 6), (5, 7)):
                L.append("v_permlane32_swap_b32 v%d, v%d" % (o + x, o + y))
            L.append("buffer_store_dwordx4 v[%d:%d], v2, s[20:23], %s offen offset:%d sc0 sc1" % (o, o + 3, so, V * 2048))
            L.append("buffer_store_dwordx4 v[%d:%d], v2, s[20:23], %s offen offset:%d sc0 sc1" % (o + 4, o + 7, so, V * 2048 + 16))
        return L
    a("""
    v_cvt_f32_u32 v14, v3
    v_mul_f32 v14, %s, v14
    v_lshlrev_b32 v15, 2, v4
    v_cvt_f32_u32 v15, v15
    v_add_f32 v5, %s, v14
    v_mul_f32 v6, v15, v5
    v_mul_f32 v15, v15, v14
    """ % (fl(1.0 / 2048), fl(32.0 / 2048)))
    a("s_waitcnt vmcnt(24)")
    stamp(a, 2)
    merge(stepA(0), [])
    a("""
    v_lshlrev_b32 v2, 6, v3
    v_lshl_add_u32 v2, v4, 5, v2
    s_lshl_b32 s77, s2, 12
    s_add_u32 s77, s77, 0x%x
    """ % ZT_OFF)
    merge(stepA(1), twiddle(0, 0, -1) + pack(FA, RE, 0) + pack(FB, IM, 0) + pack(FC, IM, 0, neg=True), lead=2)
    if "fftprof" in EXP: stamp(a, 3)
    a("s_add_u32 s79, s77, %d" % (225 * 4096))
    a("s_waitcnt vmcnt(8)")
    first.clear()
    merge(stepB(0, (0, 1)), twiddle(0, 1, -1) + pack(FA, RE, 1) + pack(FB, IM, 1) + pack(FC, IM, 1, neg=True))
    merge(stepB(0, (2, 3)), [])
    a("s_waitcnt vmcnt(0)")
    merge(stepB(1, (0, 1, 2, 3)), wmul(0), lead=2)
    if "fftprof" in EXP: stamp(a, 4)
    for x in pack(FA, RE, 0) + pack(FB, IM, 0) + pack(FC, RE, 0, neg=True):
        a(x)
    first.clear()
    merge(stepC(0, (0, 1)), wmul(1) + pack(FA, RE, 1) + pack(FB, IM, 1) + pack(FC, RE, 1, neg=True))
    merge(stepC(0, (2, 3)), [])
    merge(stepC(1, (0, 1, 2, 3)), twiddle(1, 0, +1), lead=2)
    if "fftprof" in EXP: stamp(a, 5)
    for x in pack(FA, RE, 0) + pack(FB, IM, 0):
        a(x)
    first.clear()
    merge(stepD(0), twiddle(1, 1, +1) + pack(FA, RE, 1) + pack(FB, IM, 1))
    merge(stepD(1), zout(0), lead=2)
    for x in zout(1):
        a(x)
    if "fftprof" in EXP:
        stamp(a, 6)
        stamp_flush(a, 1, 7)
        a("s_endpgm")
    a("K2_FFT_SKIP:")
    a("""
    s_lshl_b32 s77, s2, 6
    s_add_u32 s77, s77, 0x%x
    v_mov_b32 v8, s77
    v_mov_b32 v9, 1
    s_waitcnt vmcnt(0)
    s_mov_b64 exec, 1
    buffer_store_dword v9, v8, s[20:23], 0 offen sc0 sc1
    s_mov_b64 exec, -1
    s_setprio 0
    s_cmp_ge_u32 s2, 224
    s_cbranch_scc1 K2_END
    """ % CNT_OFF)
    k2_gate_load(a)
    k2_tail_prep(a)
    for r in range(64):
        a("v_mov_b32 v%d, 0" % (144 + r))
    a("s_waitcnt vmcnt(0)")
    k2_gate_fin(a)
    a("s_branch K2_TAIL")

def main(out):
    a = Asm()
    hdr = open("gated_mix__spectral_gfnet__glu_gated_geglu__prompt.s.ref").read().split("\n")
    for l in hdr:
        if l.startswith(";") and "@launch" not in l and "Override" not in l and "grid=ceil" not in l:
            a.raw(l)
    a.raw("; @launch kernel=%s grid=(256,1,1) block=(512,1,1) lds=147456" % K1)
    a.raw("; @launch kernel=%s grid=(225,1,1) block=(512,1,1) lds=147456" % K2)
    a.raw('.amdgcn_target "amdgcn-amd-amdhsa--gfx950"\n.text')
    gen_k1(a)
    gen_k2(a)
    a.raw('.section .rodata,"a"')
    a.raw(kernel_desc(K1, 224, 102))
    a.raw(kernel_desc(K2, 256, 102))
    open(out, "w").write(a.finalize())
    print("nops inserted", a.nops_inserted)

if __name__ == "__main__":
    if len(sys.argv) > 2 and sys.argv[2] == "stamp":
        STAMP = True
    main(sys.argv[1] if len(sys.argv) > 1 else "k.s")
```

```python
import sys, struct, math
sys.path.insert(0, "tools")
from asmgen import *

def f2u(x):
    return struct.unpack("<I", struct.pack("<f", x))[0]
def fl(x):
    return "0x%08x" % f2u(x)

H_OFF    = 0x0000000
PF_OFF   = 0x0700000
WT_OFF   = 0x0900000
GATE_OFF = 0x0B00000
GF_OFF   = 0x0B10000
TB_OFF   = 0x0B80000
CNT_OFF  = 0x0B85800
ZT_OFF   = 0x0C00000
BQ_OFF   = 0x0E00000
WS_SIZE  = 0x1100000

K1 = "k1_gateup_dft_kernel"
K2 = "k2_down_fft_kernel"
K3 = "k3_idft_mix_kernel"

LOG2E = 1.4426950408889634

STAMP = False
import os
EXP = os.environ.get("EXP", "")
PFG = int(os.environ.get("PFG", "20"))
HST = "" if "hplain" in EXP else " sc0 sc1"
STAMP_OFF = 0x1000000
def stamp(a, i):
    if not STAMP: return
    a("s_memrealtime s[98:99]")
    a("s_waitcnt lgkmcnt(0)")
    a("s_mov_b32 s%d, s98" % (90 + i))
    if i in (4, 5) and "clk" in EXP:
        a("s_memtime s[98:99]")
        a("s_waitcnt lgkmcnt(0)")
        a("s_mov_b32 s%d, s98" % (96 + i))
    if i in (2, 3) and "ck2" in EXP:
        a("s_memtime s[98:99]")
        a("s_waitcnt lgkmcnt(0)")
        a("s_mov_b32 s%d, s98" % (98 + i))
def stamp_flush(a, k, n):
    if not STAMP: return
    a("s_waitcnt vmcnt(0)")
    stamp(a, n)
    a("v_mov_b32 v2, 0")
    for i in range(n + 1):
        a("v_writelane_b32 v2, s%d, %d" % (90 + i, i))
    if ("clk" in EXP and k == 0) or ("ck2" in EXP and k == 1):
        a("v_writelane_b32 v2, s100, 8")
        a("v_writelane_b32 v2, s101, 9")
    a("s_lshl_b32 s98, s2, 3")
    a("s_add_u32 s98, s98, s36")
    a("s_lshl_b32 s98, s98, 6")
    a("s_add_u32 s98, s98, 0x%x" % (STAMP_OFF + k * 0x20000))
    a("v_lshlrev_b32 v3, 2, v1")
    a("s_mov_b64 exec, 0xffff")
    a("buffer_store_dword v2, v3, s[20:23], s98 offen")

class Vm:
    def __init__(self, a):
        self.a = a; self.ops = []
    def add(self, tag, n=1):
        self.ops += [tag] * n
    def cnt(self, tag):
        last = max(i for i, t in enumerate(self.ops) if t == tag)
        return len(self.ops) - 1 - last
    def wait(self, tag, extra=""):
        n = self.cnt(tag)
        assert n <= 63
        self.a("s_waitcnt vmcnt(%d)%s" % (n, extra))

DBGT = "dbgt" in EXP
def dbg_setup(a, back):
    if not DBGT: return
    a("s_load_dwordx2 s[92:93], s[0:1], 72")
    a("s_waitcnt lgkmcnt(0)")
    if back:
        a("s_sub_u32 s92, s92, 512")
        a("s_subb_u32 s93, s93, 0")
    a("s_mov_b32 s94, 256")
    a("s_mov_b32 s95, 0x00020000")
def dbg_time(a, slot, neg=False):
    if not DBGT: return
    a("s_waitcnt vmcnt(0)")
    a("s_memrealtime s[98:99]")
    a("s_waitcnt lgkmcnt(0)")
    if neg:
        a("s_not_b32 s98, s98")
    a("v_mov_b32 v2, s98")
    a("v_mov_b32 v3, %d" % (4 * slot))
    a("s_mov_b64 exec, 1")
    a("buffer_atomic_umax v2, v3, s[92:95], 0 offen")
    a("s_mov_b64 exec, -1")

def srd(a, base, ptr, nbytes):
    a("s_mov_b32 s%d, s%d" % (base, ptr))
    a("s_mov_b32 s%d, s%d" % (base + 1, ptr + 1))
    a("s_mov_b32 s%d, %d" % (base + 2, nbytes))
    a("s_mov_b32 s%d, 0x00020000" % (base + 3))

sX, sWg, sWu, sWS, sWr, sWi, sGw = 8, 12, 16, 20, 24, 28, 32
sWave = 36

def k1_side_loads(a):
    a("""
    s_and_b32 s40, s2, 31
    s_lshr_b32 s41, s2, 5
    s_lshl_b32 s41, s41, 3
    v_and_b32 v116, 255, v0
    v_lshrrev_b32 v117, 8, v0
    v_lshlrev_b32 v117, 2, v117
    v_add_u32 v117, s41, v117
    v_lshlrev_b32 v118, 5, v117
    v_add_u32 v118, s40, v118
    v_mul_u32_u24 v118, 450, v118
    v_lshl_add_u32 v118, v116, 1, v118
    s_mov_b32 s42, 14400
    s_mov_b32 s43, 28800
    s_mov_b32 s44, 43200
    buffer_load_ushort v100, v118, s[24:27], 0 offen
    buffer_load_ushort v101, v118, s[24:27], s42 offen
    buffer_load_ushort v102, v118, s[24:27], s43 offen
    buffer_load_ushort v103, v118, s[24:27], s44 offen
    buffer_load_ushort v104, v118, s[28:31], 0 offen
    buffer_load_ushort v105, v118, s[28:31], s42 offen
    buffer_load_ushort v106, v118, s[28:31], s43 offen
    buffer_load_ushort v107, v118, s[28:31], s44 offen
    """)
    a("""
    v_lshlrev_b32 v118, 5, v116
    v_add_u32 v118, s40, v118
    v_lshl_add_u32 v118, v118, 6, v117
    v_lshlrev_b32 v118, 2, v118
    v_add_u32 v118, 0x%x, v118
    """ % WT_OFF)
    a("""
    s_lshl_b32 s45, s2, 3
    s_add_u32 s45, s45, s36
    s_mul_i32 s46, s45, 896
    v_lshlrev_b32 v119, 4, v1
    v_add_u32 v120, s46, v119
    v_mov_b32 v121, 0x7ffffff0
    v_cmp_gt_u32 vcc, 56, v1
    v_cndmask_b32 v120, v121, v120, vcc
    buffer_load_dwordx4 v[108:111], v120, s[8:11], 0 offen
    buffer_load_dwordx4 v[112:115], v119, s[32:35], 0 offen
    """)

_uid = [0]
def k1_gf_compute(a):
    _uid[0] += 1
    L = "TJ%d" % _uid[0]
    a("""
    s_mov_b32 s53, 0x7ffffff0
    s_cmp_ge_u32 s45, 38
    s_cbranch_scc1 %s_E
    s_lshl_b32 s53, s45, 10
    s_add_u32 s53, s53, 0x%x
    s_cmp_ge_u32 s45, 22
    s_cbranch_scc1 %s_F
    v_and_b32 v129, 31, v1
    v_lshrrev_b32 v130, 5, v1
    s_mov_b32 s48, s45
    s_cmp_ge_u32 s48, 6
    s_cbranch_scc1 %s_X
    s_mov_b32 s52, %s
    s_mov_b32 s47, 0
    s_and_b32 s49, s48, 1
    s_lshl_b32 s49, s49, 4
    s_lshr_b32 s50, s48, 1
    s_cmp_eq_u32 s50, 1
    s_cselect_b32 s51, 0x3e800000, 0
    s_cmp_eq_u32 s50, 2
    s_cselect_b32 s50, 0xbe800000, s51
    s_branch %s_C
    %s_X:
    s_sub_u32 s48, s48, 6
    s_mov_b32 s52, %s
    s_lshr_b32 s47, s48, 2
    s_and_b32 s47, s47, 1
    s_lshl_b32 s47, s47, 5
    s_and_b32 s49, s48, 3
    s_lshl_b32 s49, s49, 4
    s_cmp_ge_u32 s48, 8
    s_cselect_b32 s50, 0x3e800000, 0
    %s_C:
    v_add_u32 v129, s47, v129
    v_cvt_f32_u32 v129, v129
    v_mul_f32 v129, s52, v129
    v_lshlrev_b32 v130, 2, v130
    v_add_u32 v130, s49, v130
    v_cvt_f32_u32 v130, v130
    v_mov_b32 v131, s50
    """ % (L, TB_OFF, L, L, fl(1.0 / 32), L, L, fl(1.0 / 64), L))
    for i in range(8):
        t = 136 + i
        a("v_add_f32 v144, %s, v130" % fl(float(8 * (i >> 2) + (i & 3))))
        a("v_fma_f32 v%d, v144, v129, v131" % t)
        a("v_cos_f32 v%d, v%d" % (t, t))
    for i in range(4):
        a("v_cvt_pk_bf16_f32 v%d, v%d, v%d" % (124 + i, 136 + 2 * i, 137 + 2 * i))
    a("s_branch %s_E" % L)
    a("%s_F:" % L)
    a("""
    s_sub_u32 s48, s45, 22
    s_lshl_b32 s48, s48, 4
    v_lshrrev_b32 v144, 2, v1
    v_add_u32 v144, s48, v144
    v_cmp_lt_u32 vcc, 224, v144
    v_cndmask_b32 v124, 0, 1, vcc
    """)
    a("%s_E:" % L)
    a("""
    v_lshlrev_b32 v128, 4, v1
    v_add_u32 v128, s53, v128
    """)

def k1_side_compute_store(a):
    for q in range(4):
        a("v_lshl_or_b32 v%d, v%d, 16, v%d" % (100 + q, 104 + q, 100 + q))
    a("v_mov_b32 v136, 0")
    for q in range(4):
        a("v_lshlrev_b32 v137, 16, v%d" % (108 + q))
        a("v_lshlrev_b32 v138, 16, v%d" % (112 + q))
        a("v_fmac_f32 v136, v137, v138")
        a("v_and_b32 v137, 0xffff0000, v%d" % (108 + q))
        a("v_and_b32 v138, 0xffff0000, v%d" % (112 + q))
        a("v_fmac_f32 v136, v137, v138")
    for sh in (1, 2, 4, 8):
        a("v_add_f32_dpp v136, v136, v136 row_shr:%d row_mask:0xf bank_mask:0xf bound_ctrl:0" % sh)
    a("""
    v_readlane_b32 s54, v136, 15
    v_readlane_b32 s55, v136, 31
    v_readlane_b32 s56, v136, 47
    v_readlane_b32 s57, v136, 63
    v_mov_b32 v136, s54
    v_add_f32 v136, s55, v136
    v_add_f32 v136, s56, v136
    v_add_f32 v136, s57, v136
    v_mul_f32 v136, %s, v136
    v_exp_f32 v136, v136
    v_add_f32 v136, 1.0, v136
    v_rcp_f32 v136, v136
    s_and_b32 s54, s45, 63
    s_lshl_b32 s54, s54, 5
    s_lshr_b32 s55, s45, 6
    s_add_u32 s54, s54, s55
    s_lshl_b32 s54, s54, 2
    s_add_u32 s54, s54, 0x%x
    v_mov_b32 v137, s54
    buffer_store_dwordx4 v[124:127], v128, s[20:23], 0 offen sc0 sc1
    v_cmp_gt_u32 vcc, 225, v116
    s_and_saveexec_b64 s[58:59], vcc
    buffer_store_dwordx4 v[100:103], v118, s[20:23], 0 offen sc0 sc1
    s_mov_b64 exec, 1
    buffer_store_dword v136, v137, s[20:23], 0 offen
    s_mov_b64 exec, s[58:59]
    """ % (fl(-LOG2E), GATE_OFF))

def k1_prefetch_wd(a):
    a("""
    s_lshr_b32 s86, s2, 3
    s_lshl_b32 s86, s86, 3
    s_add_u32 s86, s86, s36
    s_mul_i32 s86, s86, 6272
    v_lshlrev_b32 v146, 7, v1
    buffer_load_dword v147, v146, s[64:67], s86 offen
    """)

def k1_prefetch_in(a, L):
    a("""
    s_lshr_b32 s40, s2, 3
    s_lshl_b32 s40, s40, 3
    s_add_u32 s40, s40, s36
    s_min_u32 s40, s40, 209
    s_mul_i32 s41, s40, 9363
    s_lshr_b32 s41, s41, 16
    s_mul_i32 s42, s41, 7
    s_sub_u32 s42, s40, s42
    s_lshl_b32 s42, s42, 7
    s_and_b32 s43, s2, 7
    s_cmp_ge_u32 s41, 16
    s_cbranch_scc1 K1_PFW%(L)s
    s_and_b32 s44, s43, 1
    s_lshl_b32 s44, s44, 5
    s_lshl_b32 s45, s41, 1
    s_add_u32 s44, s44, s45
    s_mul_i32 s44, s44, 896
    s_add_u32 s44, s44, s42
    v_and_b32 v146, 31, v1
    v_mul_u32_u24 v146, 57344, v146
    v_lshrrev_b32 v147, 5, v1
    v_mul_u32_u24 v147, 896, v147
    v_add_u32 v146, v146, v147
    buffer_load_dword v148, v146, s[8:11], s44 offen
    s_branch K1_PFE%(L)s
    K1_PFW%(L)s:
    s_lshr_b32 s44, s43, 1
    s_mul_i32 s44, s44, 896
    s_add_u32 s44, s44, s42
    v_mul_u32_u24 v146, 3584, v1
    s_cmp_ge_u32 s41, 23
    s_cbranch_scc1 K1_PFU%(L)s
    s_sub_u32 s45, s41, 16
    s_mul_i32 s45, s45, 229376
    s_add_u32 s44, s44, s45
    buffer_load_dword v148, v146, s[12:15], s44 offen
    s_branch K1_PFE%(L)s
    K1_PFU%(L)s:
    s_sub_u32 s45, s41, 23
    s_mul_i32 s45, s45, 229376
    s_add_u32 s44, s44, s45
    buffer_load_dword v148, v146, s[16:19], s44 offen
    K1_PFE%(L)s:
    """ % {"L": L})

def gen_k1(a):
    a.raw(kernel_header(K1))
    a("""
    s_cmp_ge_u32 s2, 256
    s_cbranch_scc1 K1_END
    s_load_dwordx2 s[4:5], s[0:1], 0
    s_load_dwordx4 s[60:63], s[0:1], 8
    s_load_dwordx4 s[64:67], s[0:1], 32
    s_load_dwordx2 s[68:69], s[0:1], 56
    s_load_dwordx2 s[70:71], s[0:1], 80
    s_load_dwordx2 s[6:7], s[0:1], 48
    v_and_b32 v1, 63, v0
    v_lshrrev_b32 v2, 6, v0
    v_readfirstlane_b32 s36, v2
    s_waitcnt lgkmcnt(0)
    """)
    srd(a, sX, 4, 1835008)
    srd(a, sWr, 60, 921600)
    srd(a, sWi, 62, 921600)
    srd(a, sWg, 64, 1605632)
    srd(a, sWu, 66, 1605632)
    srd(a, sGw, 68, 896)
    srd(a, sWS, 70, WS_SIZE)
    srd(a, 64, 6, 1605632)
    stamp(a, 0)
    dbg_setup(a, False)
    dbg_time(a, 0, neg=True)
    if "pf0" in EXP:
        k1_prefetch_in(a, "A")
    a("""
    s_cmp_ge_u32 s2, 224
    s_cbranch_scc1 K1_DFT
    """)
    gen_k1_gateup(a)
    a("K1_DFT:")
    gen_k1_dft(a)
    a("K1_END:")
    a("s_endpgm")

def gen_k1_gateup(a):
    a("""
    s_and_b32 s72, s2, 7
    s_lshr_b32 s73, s2, 3
    s_and_b32 s74, s72, 1
    s_lshl_b32 s74, s74, 2
    s_and_b32 s75, s73, 3
    s_add_u32 s74, s74, s75
    s_lshr_b32 s75, s72, 1
    s_mul_i32 s75, s75, 7
    s_lshr_b32 s76, s73, 2
    s_add_u32 s75, s75, s76
    """)
    if "maprow" in EXP:
        a("s_and_b32 s74, s2, 7")
        a("s_lshr_b32 s75, s2, 3")
    a("""
    s_lshl_b32 s76, s74, 3
    s_add_u32 s76, s76, s36
    s_mul_i32 s76, s76, 896
    v_lshrrev_b32 v8, 3, v1
    v_mul_u32_u24 v9, 57344, v8
    v_add_u32 v9, s76, v9
    v_lshrrev_b32 v10, 4, v1
    v_and_b32 v11, 7, v1
    v_xor_b32 v12, v11, v10
    v_xor_b32 v13, 4, v12
    v_lshl_add_u32 v4, v12, 4, v9
    v_lshl_add_u32 v5, v13, 4, v9
    v_add_u32 v5, 458752, v5
    v_add_u32 v6, 917504, v4
    v_add_u32 v7, 917504, v5
    """)
    a("""
    s_lshl_b32 s77, s36, 3
    v_add_u32 v9, s77, v8
    v_mul_u32_u24 v9, 3584, v9
    v_and_b32 v10, 1, v10
    v_lshlrev_b32 v10, 2, v10
    v_xor_b32 v10, v11, v10
    v_lshl_add_u32 v3, v10, 4, v9
    s_lshl_b32 s77, s75, 7
    v_add_u32 v3, s77, v3
    s_lshl_b32 s78, s36, 12
    s_lshl_b32 s79, s36, 10
    """)
    def issue_part(ks, part):
        sb = (ks % 3) * 49152
        if part < 2:
            a("s_mov_b32 s80, %d" % (ks * 128))
            for q in (2 * part, 2 * part + 1):
                a("s_add_u32 m0, s78, %d" % (sb + q * 1024))
                a("buffer_load_dwordx4 v%d, s[8:11], s80 offen lds" % (4 + q))
        else:
            a("s_mov_b32 s81, %d" % (ks * 229376))
            a("s_add_u32 m0, s79, %d" % (sb + 32768))
            a("buffer_load_dwordx4 v3, s[12:15], s81 offen lds")
            a("s_add_u32 m0, s79, %d" % (sb + 40960))
            a("buffer_load_dwordx4 v3, s[16:19], s81 offen lds")
        vmt.add("S%d" % ks, 2)
    vmt = Vm(a)
    for part in (2, 0, 1):
        issue_part(0, part)
    a("""
    s_lshr_b32 s82, s36, 1
    s_and_b32 s83, s36, 1
    s_lshl_b32 s84, s82, 13
    v_and_b32 v8, 31, v1
    v_lshlrev_b32 v8, 7, v8
    v_add_u32 v8, s84, v8
    v_lshrrev_b32 v9, 5, v1
    v_lshrrev_b32 v10, 1, v1
    v_and_b32 v10, 7, v10
    """)
    for j in range(4):
        a("v_add_u32 v11, %d, v9" % (2 * j))
        a("v_xor_b32 v11, v11, v10")
        a("v_lshl_add_u32 v%d, v11, 4, v8" % (14 + j))
        a("v_add_u32 v%d, 49152, v%d" % (18 + j, 14 + j))
        a("v_add_u32 v%d, 98304, v%d" % (22 + j, 14 + j))
    a("""
    v_and_b32 v8, 15, v1
    v_lshrrev_b32 v9, 2, v8
    v_lshrrev_b32 v10, 5, v1
    v_lshl_add_u32 v9, v10, 3, v9
    v_lshlrev_b32 v9, 7, v9
    v_lshrrev_b32 v10, 4, v1
    v_and_b32 v10, 1, v10
    v_lshlrev_b32 v10, 1, v10
    v_lshrrev_b32 v11, 1, v8
    v_and_b32 v11, 1, v11
    v_add_u32 v10, v10, v11
    s_lshl_b32 s84, s83, 2
    v_add_u32 v10, s84, v10
    v_lshrrev_b32 v11, 3, v8
    v_lshlrev_b32 v11, 2, v11
    v_xor_b32 v10, v10, v11
    v_lshl_add_u32 v9, v10, 4, v9
    v_and_b32 v11, 1, v8
    v_lshl_add_u32 v26, v11, 3, v9
    v_add_u32 v27, 49152, v26
    v_add_u32 v28, 98304, v26
    """)
    ACC = 160
    for part in (2, 0, 1):
        issue_part(1, part)
    k1_side_loads(a); vmt.add("SL", 10)
    k1_gf_compute(a)
    stamp(a, 1)
    FR = [32, 48]
    def reads(g):
        st, j = (g >> 2) % 3, g & 3
        f = FR[g & 1]
        for u in range(2):
            for rd in range(2):
                a("ds_read_b64_tr_b16 v[%d:%d], v%d offset:%d" % (f + 4 * u + 2 * rd, f + 4 * u + 2 * rd + 1, 26 + st,
                                                               32768 + 8192 * u + (16 * j + 4 * rd) * 128))
        for tt in range(2):
            a("ds_read_b128 v[%d:%d], v%d offset:%d" % (f + 8 + 4 * tt, f + 11 + 4 * tt, 14 + 4 * st + j, tt * 4096))
    def mfmas(g):
        f = FR[g & 1]
        if "nomfma" in EXP: return
        for u in range(2):
            for tt in range(2):
                c = ACC + 32 * u + 16 * tt
                a("v_mfma_f32_32x32x16_bf16 v[%d:%d], v[%d:%d], v[%d:%d], %s" %
                  (c, c + 15, f + 4 * u, f + 4 * u + 3, f + 8 + 4 * tt, f + 11 + 4 * tt, "0" if g == 0 else "v[%d:%d]" % (c, c + 15)))
    vmt.wait("S0")
    stamp(a, 3)
    a("s_barrier")
    stamp(a, 4)
    reads(0)
    for g in range(28):
        i, j = g >> 2, g & 3
        if j == 3 and i < 6:
            vmt.wait("S%d" % (i + 1), " lgkmcnt(0)")
            a("s_barrier")
            reads(g + 1)
            mfmas(g)
        elif g == 27:
            a("s_waitcnt lgkmcnt(0)")
            mfmas(g)
        else:
            reads(g + 1)
            a("s_waitcnt lgkmcnt(6)")
            mfmas(g)
            if g == 8:
                k1_side_compute_store(a); vmt.add("ST", 3)
            if i + 2 <= 6:
                if "early" in EXP:
                    if j == 0:
                        for part in (2, 0, 1):
                            issue_part(i + 2, part)
                else:
                    issue_part(i + 2, (2, 0, 1)[j])
            if g == PFG:
                k1_prefetch_wd(a); vmt.add("PF")
    stamp(a, 5)
    c0 = -2.0 * 0.7978845608028654 * LOG2E
    c1 = c0 * 0.044715
    a("v_mov_b32 v64, %s" % fl(c0))
    a("""
    s_lshl_b32 s84, s74, 3
    s_lshl_b32 s85, s82, 1
    s_add_u32 s84, s84, s85
    s_mul_i32 s84, s84, 112
    s_lshl_b32 s85, s75, 1
    s_add_u32 s85, s85, s83
    s_lshl_b32 s85, s85, 1
    s_add_u32 s84, s84, s85
    s_lshl_b32 s84, s84, 10
    s_add_u32 s85, s84, 114688
    v_lshlrev_b32 v65, 4, v1
    """)
    for tt in range(2):
        G = ACC + 16 * tt; U = ACC + 32 + 16 * tt
        for r0 in range(0, 16, 4):
            T = [66 + k for k in range(4)]
            Y = [70 + k for k in range(4)]
            for k in range(4): a("v_mul_f32 v%d, v%d, v%d" % (T[k], G + r0 + k, G + r0 + k))
            for k in range(4): a("v_fmamk_f32 v%d, v%d, %s, v64" % (T[k], T[k], fl(c1)))
            for k in range(4): a("v_mul_f32 v%d, v%d, v%d" % (T[k], T[k], G + r0 + k))
            for k in range(4): a("v_exp_f32 v%d, v%d" % (T[k], T[k]))
            for k in range(4): a("v_mul_f32 v%d, v%d, v%d" % (Y[k], G + r0 + k, U + r0 + k))
            for k in range(4): a("v_add_f32 v%d, 1.0, v%d" % (T[k], T[k]))
            for k in range(4): a("v_rcp_f32 v%d, v%d" % (T[k], T[k]))
            for k in range(4): a("v_mul_f32 v%d, v%d, v%d" % (Y[k], Y[k], T[k]))
            o = 76 + 8 * tt + r0 // 2
            a("v_cvt_pk_bf16_f32 v%d, v%d, v%d" % (o, Y[0], Y[1]))
            a("v_cvt_pk_bf16_f32 v%d, v%d, v%d" % (o + 1, Y[2], Y[3]))
        o = 76 + 8 * tt
        so = "s84" if tt == 0 else "s85"
        a("buffer_store_dwordx4 v[%d:%d], v65, s[20:23], %s offen%s" % (o, o + 3, so, HST))
        a("buffer_store_dwordx4 v[%d:%d], v65, s[20:23], %s offen offset:1024%s" % (o + 4, o + 7, so, HST))
    stamp(a, 6)
    stamp_flush(a, 0, 7)
    dbg_time(a, 1)
    a("s_endpgm")

def gen_k1_dft(a):
    a("""
    s_sub_u32 s72, s2, 224
    s_lshr_b32 s73, s72, 3
    s_and_b32 s75, s73, 1
    s_lshr_b32 s73, s73, 1
    s_and_b32 s74, s72, 1
    s_lshl_b32 s74, s74, 3
    s_add_u32 s74, s74, s73
    s_lshr_b32 s73, s72, 1
    s_and_b32 s73, s73, 3
    s_lshl_b32 s73, s73, 1
    s_add_u32 s74, s74, s73
    """)
    a("""
    s_lshl_b32 s76, s74, 2
    s_lshr_b32 s77, s36, 1
    s_add_u32 s76, s76, s77
    s_mul_i32 s76, s76, 896
    s_and_b32 s77, s36, 1
    s_mul_i32 s77, s77, 917504
    s_add_u32 s76, s76, s77
    v_lshrrev_b32 v8, 3, v1
    v_mul_u32_u24 v9, 57344, v8
    v_add_u32 v9, s76, v9
    v_lshrrev_b32 v10, 4, v1
    v_and_b32 v11, 7, v1
    v_xor_b32 v12, v11, v10
    v_xor_b32 v13, 4, v12
    v_lshl_add_u32 v4, v12, 4, v9
    v_lshl_add_u32 v5, v13, 4, v9
    v_add_u32 v5, 458752, v5
    s_lshl_b32 s78, s36, 11
    """)
    def issue_stage(ks):
        a("s_mov_b32 s80, %d" % (ks * 128))
        for q in range(2):
            a("s_add_u32 m0, s78, %d" % (ks * 16384 + q * 1024))
            a("buffer_load_dwordx4 v%d, s[8:11], s80 offen lds" % (4 + q))
    issue_stage(0)
    if "pf1" in EXP:
        k1_prefetch_in(a, "C")
    k1_side_loads(a)
    a("""
    v_and_b32 v8, 31, v1
    v_lshlrev_b32 v8, 7, v8
    v_lshrrev_b32 v9, 5, v1
    v_lshrrev_b32 v10, 1, v1
    v_and_b32 v10, 7, v10
    """)
    for j in range(4):
        a("v_add_u32 v11, %d, v9" % (2 * j))
        a("v_xor_b32 v11, v11, v10")
        a("v_lshl_add_u32 v%d, v11, 4, v8" % (14 + j))
        a("v_add_u32 v%d, 65536, v%d" % (18 + j, 14 + j))
    a("""
    s_lshl_b32 s82, s75, 7
    s_lshl_b32 s83, s36, 4
    s_add_u32 s82, s82, s83
    v_and_b32 v8, 15, v1
    v_add_u32 v22, s82, v8
    v_cvt_f32_u32 v23, v22
    v_mul_f32 v23, %s, v23
    v_lshrrev_b32 v9, 5, v1
    v_lshlrev_b32 v9, 3, v9
    v_cvt_f32_u32 v9, v9
    v_lshrrev_b32 v10, 4, v1
    v_and_b32 v10, 1, v10
    v_cvt_f32_u32 v11, v10
    v_mul_f32 v11, 0.5, v11
    v_mul_f32 v11, 0.5, v11
    v_fma_f32 v24, v9, v23, v11
    """ % fl(1.0 / 448.0))
    a("""
    v_and_b32 v9, 31, v1
    v_and_b32 v11, 15, v9
    v_lshrrev_b32 v9, 4, v9
    v_lshl_add_u32 v9, v11, 1, v9
    v_mul_u32_u24 v25, 272, v9
    v_lshrrev_b32 v9, 5, v1
    v_lshl_add_u32 v25, v9, 4, v25
    s_mul_i32 s85, s36, 8704
    v_add_u32 v25, s85, v25
    v_lshrrev_b32 v9, 4, v1
    v_mul_u32_u24 v26, 272, v9
    v_lshl_add_u32 v26, v8, 4, v26
    v_add_u32 v26, s85, v26
    v_lshlrev_b32 v27, 12, v9
    v_lshl_add_u32 v27, v8, 4, v27
    s_lshl_b32 s84, s82, 13
    s_lshl_b32 s85, s74, 8
    s_add_u32 s84, s84, s85
    s_add_u32 s84, s84, 0x%x
    v_cos_f32 v28, v23
    v_add_f32 v28, v28, v28
    """ % PF_OFF)
    ACC = 160
    for r in range(64):
        a("v_mov_b32 v%d, 0" % (ACC + r))
    k1_gf_compute(a)
    issue_stage(1)
    issue_stage(2)
    stamp(a, 1)
    a("s_waitcnt vmcnt(4)")
    stamp(a, 2)
    k1_side_compute_store(a)
    FR = [32, 48]
    FF = [64, 68]
    def reads(g):
        st, j = g >> 2, g & 3
        f = FR[g & 1]
        for tt in range(4):
            off = st * 16384 + tt * 4096
            base = 14 + j
            if off >= 65536:
                off -= 65536; base = 18 + j
            a("ds_read_b128 v[%d:%d], v%d offset:%d" % (f + 4 * tt, f + 4 * tt + 3, base, off))
    def fgen(g):
        f = FF[g & 1]
        for i in range(2):
            a("v_fmamk_f32 v%d, v23, %s, v24" % (72 + i, fl(float(16 * g + i))))
        for i in range(2):
            a("v_cos_f32 v%d, v%d" % (72 + i, 72 + i))
        for i in range(2, 8):
            a("v_fma_f32 v%d, v28, v%d, -v%d" % (72 + i, 71 + i, 70 + i))
        for i in range(4):
            a("v_cvt_pk_bf16_f32 v%d, v%d, v%d" % (f + i, 72 + 2 * i, 73 + 2 * i))
    def mfmas(g):
        f = FR[g & 1]; ff = FF[g & 1]
        for tt in range(4):
            c = ACC + 16 * tt
            a("v_mfma_f32_32x32x16_bf16 v[%d:%d], v[%d:%d], v[%d:%d], v[%d:%d]" %
              (c, c + 15, f + 4 * tt, f + 4 * tt + 3, ff, ff + 3, c, c + 15))
    vm = {0: 7, 1: 7, 2: 7, 3: 4, 4: 4, 5: 3, 6: 1}
    fgen(0)
    a("s_waitcnt vmcnt(%d)" % vm[0])
    stamp(a, 3)
    a("s_barrier")
    stamp(a, 4)
    reads(0)
    for g in range(28):
        i, j = g >> 2, g & 3
        if j == 3 and i < 6:
            a("s_waitcnt vmcnt(%d)" % vm[i + 1])
            a("s_barrier")
            reads(g + 1)
            a("s_waitcnt lgkmcnt(4)")
            mfmas(g)
            fgen(g + 1)
        elif g == 27:
            a("s_waitcnt lgkmcnt(0)")
            mfmas(g)
        else:
            reads(g + 1)
            a("s_waitcnt lgkmcnt(4)")
            mfmas(g)
            fgen(g + 1)
            if j == 0 and i + 3 <= 6:
                issue_stage(i + 3)
            if g == 17:
                k1_prefetch_wd(a)
    stamp(a, 5)
    for tt in range(4):
        c = ACC + 16 * tt
        o = 32 + 8 * tt
        for k in range(8):
            a("v_cvt_pk_bf16_f32 v%d, v%d, v%d" % (o + k, c + 2 * k, c + 2 * k + 1))
        a("ds_write_b128 v25, v[%d:%d] offset:%d" % (o, o + 3, tt * 64))
        a("ds_write_b128 v25, v[%d:%d] offset:%d" % (o + 4, o + 7, tt * 64 + 32))
    a("s_waitcnt lgkmcnt(0)")
    for m in range(8):
        a("ds_read_b128 v[%d:%d], v26 offset:%d" % (64 + 4 * m, 67 + 4 * m, m * 4 * 272))
    for m in range(8):
        a("s_waitcnt lgkmcnt(%d)" % (7 - m))
        a("s_add_u32 s85, s84, %d" % (m * 16384))
        a("buffer_store_dwordx4 v[%d:%d], v27, s[20:23], s85 offen sc0 sc1" % (64 + 4 * m, 67 + 4 * m))
    stamp(a, 6)
    stamp_flush(a, 0, 7)
    dbg_time(a, 1)
    a("s_endpgm")


def mfma(a, c, A, B):
    a("v_mfma_f32_32x32x16_bf16 v[%d:%d], v[%d:%d], v[%d:%d], v[%d:%d]" % (c, c + 15, A, A + 3, B, B + 3, c, c + 15))

def gen_k2(a):
    a.raw(kernel_header(K2))
    a("""
    s_cmp_ge_u32 s2, 225
    s_cbranch_scc1 K2_END
    s_load_dwordx2 s[4:5], s[0:1], 48
    s_load_dwordx2 s[60:61], s[0:1], 64
    s_load_dwordx2 s[6:7], s[0:1], 80
    v_and_b32 v1, 63, v0
    v_lshrrev_b32 v2, 6, v0
    v_readfirstlane_b32 s36, v2
    s_waitcnt lgkmcnt(0)
    """)
    srd(a, 8, 4, 1605632)
    srd(a, 20, 6, WS_SIZE)
    srd(a, 12, 60, 1835008)
    stamp(a, 0)
    dbg_setup(a, True)
    dbg_time(a, 2, neg=True)
    tile_map_64(a)
    a("""
    s_lshl_b32 s78, s36, 14
    s_cmp_eq_u32 s36, 7
    s_cbranch_scc1 K2_FFT
    s_cmp_ge_u32 s2, 224
    s_cbranch_scc1 K2_END
    """)
    gen_k2_down(a)
    a("K2_FFT:")
    gen_k2_fft(a)
    a("K2_END:")
    a("s_endpgm")

def tile_map_64(a):
    a("""
    s_and_b32 s72, s2, 7
    s_lshl_b32 s72, s72, 2
    s_lshr_b32 s73, s2, 3
    s_and_b32 s74, s73, 3
    s_add_u32 s74, s74, s72
    s_lshr_b32 s75, s2, 5
    """)

def tr_addr(a, dst, rowmul_h, chunk_sgpr):
    sh = {4: 2, 8: 3}[rowmul_h]
    a("""
    v_and_b32 v8, 15, v1
    v_lshrrev_b32 v9, 2, v8
    v_lshrrev_b32 v10, 5, v1
    v_lshl_add_u32 v9, v10, %d, v9
    v_lshlrev_b32 v9, 7, v9
    v_lshrrev_b32 v10, 4, v1
    v_and_b32 v10, 1, v10
    v_lshlrev_b32 v10, 1, v10
    v_lshrrev_b32 v11, 1, v8
    v_and_b32 v11, 1, v11
    v_add_u32 v10, v10, v11
    v_add_u32 v10, %s, v10
    v_lshrrev_b32 v11, 3, v8
    v_lshlrev_b32 v11, 2, v11
    v_xor_b32 v10, v10, v11
    v_lshl_add_u32 v9, v10, 4, v9
    v_and_b32 v11, 1, v8
    v_lshl_add_u32 v%d, v11, 3, v9
    """ % (sh, chunk_sgpr, dst))

def k2_tail_prep(a):
    a("""
    v_lshlrev_b32 v7, 4, v1
    v_and_b32 v12, 31, v1
    v_lshrrev_b32 v13, 5, v1
    s_lshl_b32 s80, s75, 6
    v_add_u32 v208, s80, v12
    v_cvt_f32_u32 v208, v208
    v_mul_f32 v208, %s, v208
    v_add_f32 v209, %s, v208
    s_and_b32 s80, s36, 3
    s_lshl_b32 s80, s80, 6
    v_lshlrev_b32 v210, 3, v13
    v_add_u32 v210, s80, v210
    v_cvt_f32_u32 v210, v210
    s_cmp_ge_u32 s36, 4
    s_cselect_b32 s81, 0x3e800000, 0
    s_cselect_b32 s82, 0, 0.5
    v_mov_b32 v211, s81
    v_mov_b32 v212, s82
    v_fma_f32 v213, v210, v208, v211
    v_fma_f32 v214, v210, v209, v211
    v_cos_f32 v215, v208
    v_cos_f32 v216, v209
    v_add_f32 v215, v215, v215
    v_add_f32 v216, v216, v216
    v_mov_b32 v217, %s
    v_mov_b32 v218, 0
    v_mov_b32 v219, 1.0
    """ % (fl(1.0 / 448.0), fl(32.0 / 448.0), fl(224.0)))
    F = 220; SCL = 228
    for m in range(4):
        idx = [0] if m == 0 else list(range(8)) if m >= 2 else []
        for i in idx:
            a("v_add_f32 v236, %s, v210" % fl(float(16 * m + i)))
            a("v_cmp_lt_f32 vcc, v217, v236")
            a("v_cndmask_b32 v%d, v219, v218, vcc" % (SCL + i))
            a("v_cmp_eq_f32 vcc, v217, v236")
            a("v_cndmask_b32 v%d, v%d, v212, vcc" % (SCL + i, SCL + i))
            a("v_cmp_eq_f32 vcc, 0, v236")
            a("v_cndmask_b32 v%d, v%d, v212, vcc" % (SCL + i, SCL + i))
        for dtl in range(2):
            d = 96 + 4 * (4 * dtl + m)
            for i in range(2):
                a("v_fmamk_f32 v%d, v%d, %s, v%d" % (F + i, 208 + dtl, fl(float(16 * m + i)), 213 + dtl))
            for i in range(2):
                a("v_cos_f32 v%d, v%d" % (F + i, F + i))
            for i in range(2, 8):
                a("v_fma_f32 v%d, v%d, v%d, -v%d" % (F + i, 215 + dtl, F + i - 1, F + i - 2))
            for i in idx:
                a("v_mul_f32 v%d, v%d, v%d" % (F + i, F + i, SCL + i))
            for i in range(4):
                a("v_cvt_pk_bf16_f32 v%d, v%d, v%d" % (d + i, F + 2 * i, F + 2 * i + 1))
    a("""
    s_and_b32 s83, s36, 3
    s_lshl_b32 s83, s83, 6
    v_lshrrev_b32 v8, 3, v1
    v_add_u32 v8, s83, v8
    v_lshrrev_b32 v10, 4, v1
    v_and_b32 v10, 1, v10
    v_lshlrev_b32 v10, 2, v10
    v_and_b32 v11, 7, v1
    v_xor_b32 v10, v11, v10
    v_lshlrev_b32 v10, 4, v10
    s_lshr_b32 s84, s36, 2
    s_mul_i32 s84, s84, %d
    s_lshl_b32 s85, s74, 7
    s_add_u32 s84, s84, s85
    s_add_u32 s84, s84, 0x%x
    v_mov_b32 v15, 224
    s_mov_b32 s85, 0x%x
    """ % (225 * 4096, ZT_OFF, CNT_OFF))
    for b in range(8):
        a("v_add_u32 v9, %d, v8" % (8 * b))
        a("v_min_u32 v9, v9, v15")
        a("v_lshl_add_u32 v%d, v9, 12, v10" % (82 + b))
    tr_addr(a, 90, 8, "0")
    a("v_add_u32 v90, s78, v90")
    a("v_xor_b32 v91, 64, v90")

def k2_gate_load(a, d=80):
    a("""
    v_and_b32 v14, 31, v1
    v_lshlrev_b32 v14, 2, v14
    s_lshl_b32 s86, s74, 8
    s_add_u32 s86, s86, 0x%x
    buffer_load_dword v%d, v14, s[20:23], s86 offen
    buffer_load_dword v%d, v14, s[20:23], s86 offen offset:128
    """ % (GATE_OFF, d, d + 1))

def k2_gate_fin(a):
    a("""
    v_sub_f32 v92, 1.0, v80
    v_sub_f32 v93, 1.0, v81
    v_mul_f32 v80, %s, v80
    v_mul_f32 v81, %s, v81
    """ % (fl(2.0 / (2048.0 * 448.0)), fl(2.0 / (2048.0 * 448.0))))

NSTEP = 16
DEPTH = int(os.environ.get("DEPTH", "6"))
def gen_k2_down(a):
    a("""
    v_lshrrev_b32 v8, 3, v1
    v_mul_u32_u24 v9, 896, v8
    v_lshrrev_b32 v10, 4, v1
    v_and_b32 v10, 1, v10
    v_lshlrev_b32 v10, 2, v10
    v_and_b32 v11, 7, v1
    v_xor_b32 v10, v11, v10
    v_lshl_add_u32 v3, v10, 4, v9
    s_lshl_b32 s76, s75, 7
    s_mul_i32 s77, s36, 229376
    s_add_u32 s76, s76, s77
    v_add_u32 v3, s76, v3
    s_mul_i32 s76, s74, 224
    s_lshl_b32 s77, s36, 4
    s_add_u32 s76, s76, s77
    s_lshl_b32 s76, s76, 10
    v_lshlrev_b32 v4, 4, v1
    v_add_u32 v4, s76, v4
    """)
    HF = 16; AF = [128, 136]; ACC = 144
    def hreg(s):
        return HF + 8 * (s % 8)
    def issue(s):
        slot = s % 8
        a("s_mov_b32 s80, %d" % (s * 14336))
        a("s_mov_b32 s81, %d" % (s * 14336 + 7168))
        a("s_mov_b32 s82, %d" % (H_OFF + s * 1024))
        a("s_mov_b32 s83, %d" % (H_OFF + s * 1024 + 114688))
        a("s_add_u32 m0, s78, %d" % (slot * 2048))
        a("buffer_load_dwordx4 v3, s[8:11], s80 offen lds")
        a("s_add_u32 m0, s78, %d" % (slot * 2048 + 1024))
        a("buffer_load_dwordx4 v3, s[8:11], s81 offen lds")
        a("buffer_load_dwordx4 v[%d:%d], v4, s[20:23], s82 offen" % (hreg(s), hreg(s) + 3))
        a("buffer_load_dwordx4 v[%d:%d], v4, s[20:23], s83 offen" % (hreg(s) + 4, hreg(s) + 7))
    if "nobar" not in EXP:
        a("s_barrier")
    if "nodown" in EXP:
        a("s_branch K2_TAIL")
    k2_gate_load(a)
    for s in range(DEPTH):
        issue(s)
    tr_addr(a, 5, 4, "0")
    a("v_add_u32 v5, s78, v5")
    a("v_xor_b32 v6, 64, v5")
    issued = [DEPTH]
    def wait_step(k):
        a("s_waitcnt vmcnt(%d)" % (4 * (issued[0] - k - 1)))
    def reads(s):
        f = AF[s & 1]; slot = s % 8
        for dtl in range(2):
            for rd in range(2):
                a("ds_read_b64_tr_b16 v[%d:%d], v%d offset:%d" % (f + 4 * dtl + 2 * rd, f + 4 * dtl + 2 * rd + 1, 5 + dtl,
                                                               slot * 2048 + rd * 1024))
    stamp(a, 1)
    wait_step(0)
    stamp(a, 2)
    k2_gate_fin(a)
    reads(0)
    for s in range(NSTEP):
        if s + 1 < NSTEP:
            wait_step(s + 1); reads(s + 1)
            a("s_waitcnt lgkmcnt(4)")
        else:
            a("s_waitcnt lgkmcnt(0)")
        f = AF[s & 1]
        for dtl in range(2):
            for tt in range(2):
                c = ACC + 16 * (2 * dtl + tt); A = f + 4 * dtl; B = hreg(s) + 4 * tt
                a("v_mfma_f32_32x32x16_bf16 v[%d:%d], v[%d:%d], v[%d:%d], %s" %
                  (c, c + 15, A, A + 3, B, B + 3, "0" if s == 0 else "v[%d:%d]" % (c, c + 15)))
        if s + DEPTH < NSTEP:
            issue(s + DEPTH); issued[0] += 1
        if s + DEPTH == NSTEP - 1:
            k2_tail_prep(a)
    a("K2_TAIL:")
    stamp(a, 3)
    a("""
    s_cmp_lg_u32 s36, 7
    s_cbranch_scc1 K2_GO
    v_lshlrev_b32 v228, 8, v1
    K2_POLL:
    buffer_load_dword v224, v228, s[20:23], s85 offen sc1
    buffer_load_dword v225, v228, s[20:23], s85 offen offset:64 sc1
    buffer_load_dword v226, v228, s[20:23], s85 offen offset:128 sc1
    buffer_load_dword v227, v228, s[20:23], s85 offen offset:192 sc1
    s_waitcnt vmcnt(0)
    v_and_b32 v224, v224, v225
    v_and_b32 v226, v226, v227
    v_and_b32 v224, v224, v226
    v_cmp_eq_u32 vcc, 1, v224
    s_cmp_eq_u64 vcc, exec
    s_cbranch_scc1 K2_GO
    s_sleep 4
    s_branch K2_POLL
    K2_GO:
    """)
    for t4 in range(4):
        for r in range(16):
            a("v_mul_f32 v%d, v%d, v%d" % (ACC + 16 * t4 + r, ACC + 16 * t4 + r, 92 + (t4 & 1)))
    a("s_barrier")
    stamp(a, 4)
    for b in range(8):
        a("s_add_u32 m0, s78, %d" % (b * 1024))
        a("buffer_load_dwordx4 v%d, s[20:23], s84 offen sc0 sc1 lds" % (82 + b))
    AA = 16
    ZF = [128, 132, 136, 140, 208, 212, 216, 220]
    for m in range(4):
        a("s_waitcnt vmcnt(%d)" % (6 - 2 * m))
        for tt in range(2):
            f = ZF[2 * m + tt]
            for rd in range(2):
                a("ds_read_b64_tr_b16 v[%d:%d], v%d offset:%d" % (f + 2 * rd, f + 2 * rd + 1, 90 + tt, (16 * m + 4 * rd) * 128))
    for m in range(4):
        a("s_waitcnt lgkmcnt(%d)" % (12 - 4 * m))
        for dtl in range(2):
            for tt in range(2):
                c = AA + 16 * (2 * dtl + tt); A = 96 + 4 * (4 * dtl + m); B = ZF[2 * m + tt]
                a("v_mfma_f32_32x32x16_bf16 v[%d:%d], v[%d:%d], v[%d:%d], %s" %
                  (c, c + 15, A, A + 3, B, B + 3, "0" if m == 0 else "v[%d:%d]" % (c, c + 15)))
    for t4 in range(4):
        for r in range(16):
            a("v_fma_f32 v%d, v%d, v%d, v%d" % (ACC + 16 * t4 + r, AA + 16 * t4 + r, 80 + (t4 & 1), ACC + 16 * t4 + r))
    stamp(a, 5)
    a("""
    v_add_u32 v8, s78, v7
    s_lshl_b32 s79, s36, 11
    v_add_u32 v9, s79, v7
    v_add_u32 v10, 65536, v9
    """)
    for p in range(8):
        for q in range(2):
            c = ACC + 8 * p + 4 * q
            a("ds_write_b128 v8, v[%d:%d] offset:%d" % (c, c + 3, p * 2048 + q * 1024))
    a("s_waitcnt lgkmcnt(0)")
    a("s_barrier")
    for w2 in range(8):
        for q in range(2):
            d = 16 + 8 * w2 + 4 * q
            a("ds_read_b128 v[%d:%d], v%d offset:%d" % (d, d + 3, 9 if w2 < 4 else 10, (w2 & 3) * 16384 + q * 1024))
    a("""
    s_lshr_b32 s80, s36, 1
    s_and_b32 s81, s80, 1
    s_lshr_b32 s80, s80, 1
    s_lshl_b32 s82, s74, 1
    s_add_u32 s82, s82, s81
    s_mul_i32 s82, s82, 896
    s_lshl_b32 s83, s75, 1
    s_add_u32 s83, s83, s80
    s_lshl_b32 s83, s83, 6
    s_add_u32 s82, s82, s83
    s_and_b32 s83, s36, 1
    s_lshl_b32 s83, s83, 5
    s_add_u32 s82, s82, s83
    v_mul_u32_u24 v11, 57344, v12
    v_lshl_add_u32 v11, v13, 4, v11
    """)
    for w2 in range(1, 8):
        a("s_waitcnt lgkmcnt(%d)" % (2 * (7 - w2)))
        for k in range(8):
            a("v_add_f32 v%d, v%d, v%d" % (16 + k, 16 + k, 16 + 8 * w2 + k))
    for k in range(4):
        a("v_cvt_pk_bf16_f32 v%d, v%d, v%d" % (80 + k, 16 + 2 * k, 17 + 2 * k))
    a("v_permlane32_swap_b32 v80, v82")
    a("v_permlane32_swap_b32 v81, v83")
    a("buffer_store_dwordx4 v[80:83], v11, s[12:15], s82 offen")
    stamp(a, 6)
    stamp_flush(a, 1, 7)
    dbg_time(a, 3)
    a("s_endpgm")

def gen_k2_fft(a):
    if "noprio" not in EXP:
        a("s_setprio 3")
    a("""
    s_lshl_b32 s73, s2, 13
    s_add_u32 s66, s73, 0x%x
    s_add_u32 s67, s66, 4096
    s_add_u32 s76, s73, 0x%x
    v_and_b32 v3, 31, v1
    v_lshrrev_b32 v4, 5, v1
    v_lshlrev_b32 v2, 6, v3
    v_lshl_add_u32 v2, v4, 4, v2
    v_lshlrev_b32 v5, 8, v3
    v_lshl_add_u32 v5, v4, 4, v5
    v_lshlrev_b32 v7, 4, v1
    v_add_u32 v6, s78, v7
    """ % (PF_OFF, WT_OFF))
    CR, CI, NCI = 16, 24, 32
    ER, EI = 40, 72
    WV = 104
    ACC = 136
    FA, FB, FC = 200, 216, 232
    PR, PI = 200, 216
    k2_gate_load(a, 8)
    for c, base, so in ((0, PR, "s66"), (1, PI, "s67")):
        for T in range(2):
            for j in range(2):
                d = base + 4 * (2 * T + j)
                a("buffer_load_dwordx4 v[%d:%d], v2, s[20:23], %s offen offset:%d" % (d, d + 3, so, T * 2048 + j * 32))
    for e in range(6):
        if e % 4 == 0:
            a("s_mov_b32 s79, 0x%x" % (TB_OFF + e * 1024))
        a("buffer_load_dwordx4 v[%d:%d], v7, s[20:23], s79 offen offset:%d" % (16 + 4 * e, 19 + 4 * e, (e % 4) * 1024))
    def tw_dma(c):
        a("s_add_u32 m0, s78, %d" % (c * 1024))
        a("s_mov_b32 s79, 0x%x" % (TB_OFF + (22 + c) * 1024))
        a("buffer_load_dwordx4 v7, s[20:23], s79 offen lds")
    for e in range(6, 22):
        if (e - 6) % 4 == 0:
            a("s_mov_b32 s79, 0x%x" % (TB_OFF + e * 1024))
        a("buffer_load_dwordx4 v[%d:%d], v7, s[20:23], s79 offen offset:%d" % (16 + 4 * e, 19 + 4 * e, ((e - 6) % 4) * 1024))
    for U in range(2):
        for q in range(4):
            d = WV + 4 * (4 * U + q)
            a("buffer_load_dwordx4 v[%d:%d], v5, s[20:23], s76 offen offset:%d" % (d, d + 3, U * 128 + q * 32))
    if "nobar" not in EXP:
        a("s_barrier")
    if "nofft" in EXP:
        a("s_waitcnt vmcnt(0)")
        a("s_branch K2_FFT_SKIP")
    stamp(a, 1)
    RE = [ACC, ACC + 16]; IM = [ACC + 32, ACC + 48]
    first = set()
    def MF(c, A, B):
        z = c not in first
        first.add(c)
        return "v_mfma_f32_32x32x16_bf16 v[%d:%d], v[%d:%d], v[%d:%d], %s" % (
            c, c + 15, A, A + 3, B, B + 3, "0" if z else "v[%d:%d]" % (c, c + 15))
    def merge(M, V, lead=1):
        n = len(M)
        k = 0
        for idx, m in enumerate(M):
            a(m)
            if idx + 1 < lead:
                continue
            tgt = (len(V) * (idx + 2 - lead)) // (n + 1 - lead)
            while k < tgt:
                a(V[k]); k += 1
        while k < len(V):
            a(V[k]); k += 1
    TWB = [248, 8]
    def twiddle(tbl, T, sign):
        L = []
        th, ph = (14, 15) if (tbl == 0 or T == 0) else (5, 6)
        for q in range(4):
            t = 248
            for k in range(4):
                kk = (32 * T if tbl == 0 else 0) + 8 * q + k
                L.append("v_fmamk_f32 v%d, v%d, %s, v%d" % (t + k, th, fl(float(kk)), ph))
            for k in range(4):
                L.append("v_sin_f32 v%d, v%d" % (t + 4 + k, t + k))
            for k in range(4):
                L.append("v_cos_f32 v%d, v%d" % (t + k, t + k))
            for k in range(4):
                xr, xi = RE[T] + 4 * q + k, IM[T] + 4 * q + k
                c, s = t + k, t + 4 + k
                L.append("v_mul_f32 v7, v%d, v%d" % (xr, s))
                L.append("v_mul_f32 v%d, v%d, v%d" % (s, xi, s))
                if sign < 0:
                    L.append("v_fma_f32 v%d, v%d, v%d, v%d" % (xr, xr, c, s))
                    L.append("v_fma_f32 v%d, v%d, v%d, -v7" % (xi, xi, c))
                else:
                    L.append("v_fma_f32 v%d, v%d, v%d, -v%d" % (xr, xr, c, s))
                    L.append("v_fma_f32 v%d, v%d, v%d, v7" % (xi, xi, c))
        return L
    def pack(dst, tiles, T, neg=False):
        n = "-" if neg else ""
        return ["v_cvt_pk_bf16_f32 v%d, %sv%d, %sv%d" % (dst + 8 * T + k, n, tiles[T] + 2 * k, n, tiles[T] + 2 * k + 1)
                for k in range(8)]
    def wmul(U):
        L = []
        for r in range(16):
            w = WV + 16 * U + r
            xr, xi = RE[U] + r, IM[U] + r
            L += ["v_lshlrev_b32 v10, 16, v%d" % w, "v_and_b32 v11, 0xffff0000, v%d" % w,
                  "v_mul_f32 v12, v%d, v11" % xr, "v_mul_f32 v13, v%d, v11" % xi,
                  "v_fma_f32 v%d, v%d, v10, -v13" % (xr, xr), "v_fma_f32 v%d, v%d, v10, v12" % (xi, xi)]
        return L
    def stepA(T):
        M = []
        for j in range(2):
            M += [MF(RE[T], PR + 4 * (2 * T + j), CR + 4 * j), MF(IM[T], PR + 4 * (2 * T + j), CI + 4 * j)]
        for j in range(2):
            M += [MF(RE[T], PI + 4 * (2 * T + j), NCI + 4 * j), MF(IM[T], PI + 4 * (2 * T + j), CR + 4 * j)]
        return M
    def stepB(U, jjs):
        M = []
        for jj in jjs:
            e = 4 * (4 * U + jj)
            M += [MF(RE[U], ER + e, FA + 4 * jj), MF(IM[U], EI + e, FA + 4 * jj),
                  MF(RE[U], EI + e, FC + 4 * jj), MF(IM[U], ER + e, FB + 4 * jj)]
        return M
    def stepC(V, jjs):
        M = []
        for jj in jjs:
            e = 4 * (4 * V + jj)
            M += [MF(RE[V], FA + 4 * jj, ER + e), MF(IM[V], FB + 4 * jj, ER + e),
                  MF(RE[V], FB + 4 * jj, EI + e), MF(IM[V], FC + 4 * jj, EI + e)]
        return M
    def stepD(V):
        M = []
        for j in range(2):
            M += [MF(RE[V], CR + 4 * j, FA + 4 * (2 * V + j)), MF(IM[V], CR + 4 * j, FB + 4 * (2 * V + j))]
        for j in range(2):
            M += [MF(RE[V], CI + 4 * j, FB + 4 * (2 * V + j)), MF(IM[V], NCI + 4 * j, FA + 4 * (2 * V + j))]
        return M
    def zout(V):
        L = []
        for c, tiles, so, o in ((0, RE, "s77", WV + 16 * V), (1, IM, "s79", WV + 16 * V + 8)):
            t = tiles[V]
            pos = {0: 0, 2: 2, 1: 4, 3: 6}
            for q in range(4):
                L.append("v_cvt_pk_bf16_f32 v%d, v%d, v%d" % (o + pos[q], t + 4 * q, t + 4 * q + 1))
                L.append("v_cvt_pk_bf16_f32 v%d, v%d, v%d" % (o + pos[q] + 1, t + 4 * q + 2, t + 4 * q + 3))
            for x, y in ((0, 2), (1, 3), (4, 6), (5, 7)):
                L.append("v_permlane32_swap_b32 v%d, v%d" % (o + x, o + y))
            L.append("buffer_store_dwordx4 v[%d:%d], v2, s[20:23], %s offen offset:%d sc0 sc1" % (o, o + 3, so, V * 2048))
            L.append("buffer_store_dwordx4 v[%d:%d], v2, s[20:23], %s offen offset:%d sc0 sc1" % (o + 4, o + 7, so, V * 2048 + 16))
        return L
    a("""
    v_cvt_f32_u32 v14, v3
    v_mul_f32 v14, %s, v14
    v_lshlrev_b32 v15, 2, v4
    v_cvt_f32_u32 v15, v15
    v_add_f32 v5, %s, v14
    v_mul_f32 v6, v15, v5
    v_mul_f32 v15, v15, v14
    """ % (fl(1.0 / 2048), fl(32.0 / 2048)))
    a("s_waitcnt vmcnt(24)")
    stamp(a, 2)
    merge(stepA(0), [])
    a("""
    v_lshlrev_b32 v2, 6, v3
    v_lshl_add_u32 v2, v4, 5, v2
    s_lshl_b32 s77, s2, 12
    s_add_u32 s77, s77, 0x%x
    """ % ZT_OFF)
    merge(stepA(1), twiddle(0, 0, -1) + pack(FA, RE, 0) + pack(FB, IM, 0) + pack(FC, IM, 0, neg=True), lead=2)
    if "fftprof" in EXP: stamp(a, 3)
    a("s_add_u32 s79, s77, %d" % (225 * 4096))
    a("s_waitcnt vmcnt(8)")
    first.clear()
    merge(stepB(0, (0, 1)), twiddle(0, 1, -1) + pack(FA, RE, 1) + pack(FB, IM, 1) + pack(FC, IM, 1, neg=True))
    merge(stepB(0, (2, 3)), [])
    a("s_waitcnt vmcnt(0)")
    merge(stepB(1, (0, 1, 2, 3)), wmul(0), lead=2)
    if "fftprof" in EXP: stamp(a, 4)
    for x in pack(FA, RE, 0) + pack(FB, IM, 0) + pack(FC, RE, 0, neg=True):
        a(x)
    first.clear()
    merge(stepC(0, (0, 1)), wmul(1) + pack(FA, RE, 1) + pack(FB, IM, 1) + pack(FC, RE, 1, neg=True))
    merge(stepC(0, (2, 3)), [])
    merge(stepC(1, (0, 1, 2, 3)), twiddle(1, 0, +1), lead=2)
    if "fftprof" in EXP: stamp(a, 5)
    for x in pack(FA, RE, 0) + pack(FB, IM, 0):
        a(x)
    first.clear()
    merge(stepD(0), twiddle(1, 1, +1) + pack(FA, RE, 1) + pack(FB, IM, 1))
    merge(stepD(1), zout(0), lead=2)
    for x in zout(1):
        a(x)
    if "fftprof" in EXP:
        stamp(a, 6)
        stamp_flush(a, 1, 7)
        a("s_endpgm")
    a("K2_FFT_SKIP:")
    a("v_mov_b32 v80, v8")
    a("v_mov_b32 v81, v9")
    a("""
    s_lshl_b32 s77, s2, 6
    s_add_u32 s77, s77, 0x%x
    v_mov_b32 v8, s77
    v_mov_b32 v9, 1
    s_waitcnt vmcnt(0)
    s_mov_b64 exec, 1
    buffer_store_dword v9, v8, s[20:23], 0 offen sc0 sc1
    s_mov_b64 exec, -1
    s_setprio 0
    s_cmp_ge_u32 s2, 224
    s_cbranch_scc1 K2_END
    """ % CNT_OFF)
    k2_gate_fin(a)
    k2_tail_prep(a)
    for r in range(64):
        a("v_mov_b32 v%d, 0" % (144 + r))
    a("s_branch K2_TAIL")

def main(out):
    a = Asm()
    hdr = open("gated_mix__spectral_gfnet__glu_gated_geglu__prompt.s.ref").read().split("\n")
    for l in hdr:
        if l.startswith(";") and "@launch" not in l and "Override" not in l and "grid=ceil" not in l:
            a.raw(l)
    a.raw("; @launch kernel=%s grid=(256,1,1) block=(512,1,1) lds=147456" % K1)
    a.raw("; @launch kernel=%s grid=(225,1,1) block=(512,1,1) lds=147456" % K2)
    a.raw('.amdgcn_target "amdgcn-amd-amdhsa--gfx950"\n.text')
    gen_k1(a)
    gen_k2(a)
    a.raw('.section .rodata,"a"')
    a.raw(kernel_desc(K1, 224, 102))
    a.raw(kernel_desc(K2, 256, 102))
    open(out, "w").write(a.finalize())
    print("nops inserted", a.nops_inserted)

if __name__ == "__main__":
    if len(sys.argv) > 2 and sys.argv[2] == "stamp":
        STAMP = True
    main(sys.argv[1] if len(sys.argv) > 1 else "k.s")
```

```python
import sys, struct, math
sys.path.insert(0, "tools")
from asmgen import *

def f2u(x):
    return struct.unpack("<I", struct.pack("<f", x))[0]
def fl(x):
    return "0x%08x" % f2u(x)

H_OFF    = 0x0000000
PF_OFF   = 0x0700000
WT_OFF   = 0x0900000
GATE_OFF = 0x0B00000
GF_OFF   = 0x0B10000
TB_OFF   = 0x0B80000
CNT_OFF  = 0x0B85800
ZT_OFF   = 0x0C00000
BQ_OFF   = 0x0E00000
WS_SIZE  = 0x1100000

K1 = "k1_gateup_dft_kernel"
K2 = "k2_down_fft_kernel"
K3 = "k3_idft_mix_kernel"

LOG2E = 1.4426950408889634

STAMP = False
import os
EXP = os.environ.get("EXP", "")
PFG = int(os.environ.get("PFG", "20"))
HST = "" if "hplain" in EXP else " sc0 sc1"
STAMP_OFF = 0x1000000
def stamp(a, i):
    if not STAMP: return
    a("s_memrealtime s[98:99]")
    a("s_waitcnt lgkmcnt(0)")
    a("s_mov_b32 s%d, s98" % (90 + i))
    if i in (4, 5) and "clk" in EXP:
        a("s_memtime s[98:99]")
        a("s_waitcnt lgkmcnt(0)")
        a("s_mov_b32 s%d, s98" % (96 + i))
    if i in (2, 3) and "ck2" in EXP:
        a("s_memtime s[98:99]")
        a("s_waitcnt lgkmcnt(0)")
        a("s_mov_b32 s%d, s98" % (98 + i))
def stamp_flush(a, k, n):
    if not STAMP: return
    a("s_waitcnt vmcnt(0)")
    stamp(a, n)
    a("v_mov_b32 v2, 0")
    for i in range(n + 1):
        a("v_writelane_b32 v2, s%d, %d" % (90 + i, i))
    if ("clk" in EXP and k == 0) or ("ck2" in EXP and k == 1):
        a("v_writelane_b32 v2, s100, 8")
        a("v_writelane_b32 v2, s101, 9")
    a("s_lshl_b32 s98, s2, 3")
    a("s_add_u32 s98, s98, s36")
    a("s_lshl_b32 s98, s98, 6")
    a("s_add_u32 s98, s98, 0x%x" % (STAMP_OFF + k * 0x20000))
    a("v_lshlrev_b32 v3, 2, v1")
    a("s_mov_b64 exec, 0xffff")
    a("buffer_store_dword v2, v3, s[20:23], s98 offen")

class Vm:
    def __init__(self, a):
        self.a = a; self.ops = []
    def add(self, tag, n=1):
        self.ops += [tag] * n
    def cnt(self, tag):
        last = max(i for i, t in enumerate(self.ops) if t == tag)
        return len(self.ops) - 1 - last
    def wait(self, tag, extra=""):
        n = self.cnt(tag)
        assert n <= 63
        self.a("s_waitcnt vmcnt(%d)%s" % (n, extra))

DBGT = "dbgt" in EXP
def dbg_setup(a, back):
    if not DBGT: return
    a("s_load_dwordx2 s[92:93], s[0:1], 72")
    a("s_waitcnt lgkmcnt(0)")
    if not back:
        a("s_add_u32 s92, s92, 512")
        a("s_addc_u32 s93, s93, 0")
    a("s_mov_b32 s94, 256")
    a("s_mov_b32 s95, 0x00020000")
def dbg_time(a, slot, neg=False):
    if not DBGT: return
    a("s_waitcnt vmcnt(0)")
    a("s_memrealtime s[98:99]")
    a("s_waitcnt lgkmcnt(0)")
    if neg:
        a("s_not_b32 s98, s98")
    a("v_mov_b32 v2, s98")
    a("s_lshl_b32 s99, s36, 16")
    if neg:
        a("s_lshr_b32 s97, s2, 2")
        a("s_lshl_b32 s97, s97, 16")
        a("s_add_u32 s99, s99, s97")
    a("s_add_u32 s99, s99, %d" % (4 * slot))
    a("v_mov_b32 v3, s99")
    a("s_mov_b64 exec, 1")
    a("buffer_atomic_umax v2, v3, s[92:95], 0 offen")
    a("s_mov_b64 exec, -1")

def srd(a, base, ptr, nbytes):
    a("s_mov_b32 s%d, s%d" % (base, ptr))
    a("s_mov_b32 s%d, s%d" % (base + 1, ptr + 1))
    a("s_mov_b32 s%d, %d" % (base + 2, nbytes))
    a("s_mov_b32 s%d, 0x00020000" % (base + 3))

sX, sWg, sWu, sWS, sWr, sWi, sGw = 8, 12, 16, 20, 24, 28, 32
sWave = 36

def k1_side_loads(a):
    a("""
    s_and_b32 s40, s2, 31
    s_lshr_b32 s41, s2, 5
    s_lshl_b32 s41, s41, 3
    v_and_b32 v116, 255, v0
    v_lshrrev_b32 v117, 8, v0
    v_lshlrev_b32 v117, 2, v117
    v_add_u32 v117, s41, v117
    v_lshlrev_b32 v118, 5, v117
    v_add_u32 v118, s40, v118
    v_mul_u32_u24 v118, 450, v118
    v_lshl_add_u32 v118, v116, 1, v118
    s_mov_b32 s42, 14400
    s_mov_b32 s43, 28800
    s_mov_b32 s44, 43200
    buffer_load_ushort v100, v118, s[24:27], 0 offen
    buffer_load_ushort v101, v118, s[24:27], s42 offen
    buffer_load_ushort v102, v118, s[24:27], s43 offen
    buffer_load_ushort v103, v118, s[24:27], s44 offen
    buffer_load_ushort v104, v118, s[28:31], 0 offen
    buffer_load_ushort v105, v118, s[28:31], s42 offen
    buffer_load_ushort v106, v118, s[28:31], s43 offen
    buffer_load_ushort v107, v118, s[28:31], s44 offen
    """)
    a("""
    v_lshlrev_b32 v118, 5, v116
    v_add_u32 v118, s40, v118
    v_lshl_add_u32 v118, v118, 6, v117
    v_lshlrev_b32 v118, 2, v118
    v_add_u32 v118, 0x%x, v118
    """ % WT_OFF)
    a("""
    s_lshl_b32 s45, s2, 3
    s_add_u32 s45, s45, s36
    s_mul_i32 s46, s45, 896
    v_lshlrev_b32 v119, 4, v1
    v_add_u32 v120, s46, v119
    v_mov_b32 v121, 0x7ffffff0
    v_cmp_gt_u32 vcc, 56, v1
    v_cndmask_b32 v120, v121, v120, vcc
    buffer_load_dwordx4 v[108:111], v120, s[8:11], 0 offen
    buffer_load_dwordx4 v[112:115], v119, s[32:35], 0 offen
    """)

_uid = [0]
def k1_gf_compute(a):
    _uid[0] += 1
    L = "TJ%d" % _uid[0]
    a("""
    s_mov_b32 s53, 0x7ffffff0
    s_cmp_ge_u32 s45, 38
    s_cbranch_scc1 %s_E
    s_lshl_b32 s53, s45, 10
    s_add_u32 s53, s53, 0x%x
    s_cmp_ge_u32 s45, 22
    s_cbranch_scc1 %s_F
    v_and_b32 v129, 31, v1
    v_lshrrev_b32 v130, 5, v1
    s_mov_b32 s48, s45
    s_cmp_ge_u32 s48, 6
    s_cbranch_scc1 %s_X
    s_mov_b32 s52, %s
    s_mov_b32 s47, 0
    s_and_b32 s49, s48, 1
    s_lshl_b32 s49, s49, 4
    s_lshr_b32 s50, s48, 1
    s_cmp_eq_u32 s50, 1
    s_cselect_b32 s51, 0x3e800000, 0
    s_cmp_eq_u32 s50, 2
    s_cselect_b32 s50, 0xbe800000, s51
    s_branch %s_C
    %s_X:
    s_sub_u32 s48, s48, 6
    s_mov_b32 s52, %s
    s_lshr_b32 s47, s48, 2
    s_and_b32 s47, s47, 1
    s_lshl_b32 s47, s47, 5
    s_and_b32 s49, s48, 3
    s_lshl_b32 s49, s49, 4
    s_cmp_ge_u32 s48, 8
    s_cselect_b32 s50, 0x3e800000, 0
    %s_C:
    v_add_u32 v129, s47, v129
    v_cvt_f32_u32 v129, v129
    v_mul_f32 v129, s52, v129
    v_lshlrev_b32 v130, 2, v130
    v_add_u32 v130, s49, v130
    v_cvt_f32_u32 v130, v130
    v_mov_b32 v131, s50
    """ % (L, TB_OFF, L, L, fl(1.0 / 32), L, L, fl(1.0 / 64), L))
    for i in range(8):
        t = 136 + i
        a("v_add_f32 v144, %s, v130" % fl(float(8 * (i >> 2) + (i & 3))))
        a("v_fma_f32 v%d, v144, v129, v131" % t)
        a("v_cos_f32 v%d, v%d" % (t, t))
    for i in range(4):
        a("v_cvt_pk_bf16_f32 v%d, v%d, v%d" % (124 + i, 136 + 2 * i, 137 + 2 * i))
    a("s_branch %s_E" % L)
    a("%s_F:" % L)
    a("""
    s_sub_u32 s48, s45, 22
    s_lshl_b32 s48, s48, 4
    v_lshrrev_b32 v144, 2, v1
    v_add_u32 v144, s48, v144
    v_cmp_lt_u32 vcc, 224, v144
    v_cndmask_b32 v124, 0, 1, vcc
    """)
    a("%s_E:" % L)
    a("""
    v_lshlrev_b32 v128, 4, v1
    v_add_u32 v128, s53, v128
    """)

def k1_side_compute_store(a):
    for q in range(4):
        a("v_lshl_or_b32 v%d, v%d, 16, v%d" % (100 + q, 104 + q, 100 + q))
    a("v_mov_b32 v136, 0")
    for q in range(4):
        a("v_lshlrev_b32 v137, 16, v%d" % (108 + q))
        a("v_lshlrev_b32 v138, 16, v%d" % (112 + q))
        a("v_fmac_f32 v136, v137, v138")
        a("v_and_b32 v137, 0xffff0000, v%d" % (108 + q))
        a("v_and_b32 v138, 0xffff0000, v%d" % (112 + q))
        a("v_fmac_f32 v136, v137, v138")
    for sh in (1, 2, 4, 8):
        a("v_add_f32_dpp v136, v136, v136 row_shr:%d row_mask:0xf bank_mask:0xf bound_ctrl:0" % sh)
    a("""
    v_readlane_b32 s54, v136, 15
    v_readlane_b32 s55, v136, 31
    v_readlane_b32 s56, v136, 47
    v_readlane_b32 s57, v136, 63
    v_mov_b32 v136, s54
    v_add_f32 v136, s55, v136
    v_add_f32 v136, s56, v136
    v_add_f32 v136, s57, v136
    v_mul_f32 v136, %s, v136
    v_exp_f32 v136, v136
    v_add_f32 v136, 1.0, v136
    v_rcp_f32 v136, v136
    s_and_b32 s54, s45, 63
    s_lshl_b32 s54, s54, 5
    s_lshr_b32 s55, s45, 6
    s_add_u32 s54, s54, s55
    s_lshl_b32 s54, s54, 2
    s_add_u32 s54, s54, 0x%x
    v_mov_b32 v137, s54
    buffer_store_dwordx4 v[124:127], v128, s[20:23], 0 offen sc0 sc1
    v_cmp_gt_u32 vcc, 225, v116
    s_and_saveexec_b64 s[58:59], vcc
    buffer_store_dwordx4 v[100:103], v118, s[20:23], 0 offen sc0 sc1
    s_mov_b64 exec, 1
    buffer_store_dword v136, v137, s[20:23], 0 offen
    s_mov_b64 exec, s[58:59]
    """ % (fl(-LOG2E), GATE_OFF))

def k1_prefetch_wd(a):
    a("""
    s_lshr_b32 s86, s2, 3
    s_lshl_b32 s86, s86, 3
    s_add_u32 s86, s86, s36
    s_mul_i32 s86, s86, 6272
    v_lshlrev_b32 v146, 7, v1
    buffer_load_dword v147, v146, s[64:67], s86 offen
    """)

def k1_prefetch_in(a, L):
    a("""
    s_lshr_b32 s40, s2, 3
    s_lshl_b32 s40, s40, 3
    s_add_u32 s40, s40, s36
    s_min_u32 s40, s40, 209
    s_mul_i32 s41, s40, 9363
    s_lshr_b32 s41, s41, 16
    s_mul_i32 s42, s41, 7
    s_sub_u32 s42, s40, s42
    s_lshl_b32 s42, s42, 7
    s_and_b32 s43, s2, 7
    s_cmp_ge_u32 s41, 16
    s_cbranch_scc1 K1_PFW%(L)s
    s_and_b32 s44, s43, 1
    s_lshl_b32 s44, s44, 5
    s_lshl_b32 s45, s41, 1
    s_add_u32 s44, s44, s45
    s_mul_i32 s44, s44, 896
    s_add_u32 s44, s44, s42
    v_and_b32 v146, 31, v1
    v_mul_u32_u24 v146, 57344, v146
    v_lshrrev_b32 v147, 5, v1
    v_mul_u32_u24 v147, 896, v147
    v_add_u32 v146, v146, v147
    buffer_load_dword v148, v146, s[8:11], s44 offen
    s_branch K1_PFE%(L)s
    K1_PFW%(L)s:
    s_lshr_b32 s44, s43, 1
    s_mul_i32 s44, s44, 896
    s_add_u32 s44, s44, s42
    v_mul_u32_u24 v146, 3584, v1
    s_cmp_ge_u32 s41, 23
    s_cbranch_scc1 K1_PFU%(L)s
    s_sub_u32 s45, s41, 16
    s_mul_i32 s45, s45, 229376
    s_add_u32 s44, s44, s45
    buffer_load_dword v148, v146, s[12:15], s44 offen
    s_branch K1_PFE%(L)s
    K1_PFU%(L)s:
    s_sub_u32 s45, s41, 23
    s_mul_i32 s45, s45, 229376
    s_add_u32 s44, s44, s45
    buffer_load_dword v148, v146, s[16:19], s44 offen
    K1_PFE%(L)s:
    """ % {"L": L})

def gen_k1(a):
    a.raw(kernel_header(K1))
    a("""
    s_cmp_ge_u32 s2, 256
    s_cbranch_scc1 K1_END
    s_load_dwordx2 s[4:5], s[0:1], 0
    s_load_dwordx4 s[60:63], s[0:1], 8
    s_load_dwordx4 s[64:67], s[0:1], 32
    s_load_dwordx2 s[68:69], s[0:1], 56
    s_load_dwordx2 s[70:71], s[0:1], 80
    s_load_dwordx2 s[6:7], s[0:1], 48
    v_and_b32 v1, 63, v0
    v_lshrrev_b32 v2, 6, v0
    v_readfirstlane_b32 s36, v2
    s_waitcnt lgkmcnt(0)
    """)
    srd(a, sX, 4, 1835008)
    srd(a, sWr, 60, 921600)
    srd(a, sWi, 62, 921600)
    srd(a, sWg, 64, 1605632)
    srd(a, sWu, 66, 1605632)
    srd(a, sGw, 68, 896)
    srd(a, sWS, 70, WS_SIZE)
    srd(a, 64, 6, 1605632)
    stamp(a, 0)
    dbg_setup(a, False)
    dbg_time(a, 0, neg=True)
    if "pf0" in EXP:
        k1_prefetch_in(a, "A")
    a("""
    s_cmp_ge_u32 s2, 224
    s_cbranch_scc1 K1_DFT
    """)
    gen_k1_gateup(a)
    a("K1_DFT:")
    gen_k1_dft(a)
    a("K1_END:")
    a("s_endpgm")

def gen_k1_gateup(a):
    a("""
    s_and_b32 s72, s2, 7
    s_lshr_b32 s73, s2, 3
    s_and_b32 s74, s72, 1
    s_lshl_b32 s74, s74, 2
    s_and_b32 s75, s73, 3
    s_add_u32 s74, s74, s75
    s_lshr_b32 s75, s72, 1
    s_mul_i32 s75, s75, 7
    s_lshr_b32 s76, s73, 2
    s_add_u32 s75, s75, s76
    """)
    if "maprow" in EXP:
        a("s_and_b32 s74, s2, 7")
        a("s_lshr_b32 s75, s2, 3")
    a("""
    s_lshl_b32 s76, s74, 3
    s_add_u32 s76, s76, s36
    s_mul_i32 s76, s76, 896
    v_lshrrev_b32 v8, 3, v1
    v_mul_u32_u24 v9, 57344, v8
    v_add_u32 v9, s76, v9
    v_lshrrev_b32 v10, 4, v1
    v_and_b32 v11, 7, v1
    v_xor_b32 v12, v11, v10
    v_xor_b32 v13, 4, v12
    v_lshl_add_u32 v4, v12, 4, v9
    v_lshl_add_u32 v5, v13, 4, v9
    v_add_u32 v5, 458752, v5
    v_add_u32 v6, 917504, v4
    v_add_u32 v7, 917504, v5
    """)
    a("""
    s_lshl_b32 s77, s36, 3
    v_add_u32 v9, s77, v8
    v_mul_u32_u24 v9, 3584, v9
    v_and_b32 v10, 1, v10
    v_lshlrev_b32 v10, 2, v10
    v_xor_b32 v10, v11, v10
    v_lshl_add_u32 v3, v10, 4, v9
    s_lshl_b32 s77, s75, 7
    v_add_u32 v3, s77, v3
    s_lshl_b32 s78, s36, 12
    s_lshl_b32 s79, s36, 10
    """)
    def issue_part(ks, part):
        sb = (ks % 3) * 49152
        if part < 2:
            a("s_mov_b32 s80, %d" % (ks * 128))
            for q in (2 * part, 2 * part + 1):
                a("s_add_u32 m0, s78, %d" % (sb + q * 1024))
                a("buffer_load_dwordx4 v%d, s[8:11], s80 offen lds" % (4 + q))
        else:
            a("s_mov_b32 s81, %d" % (ks * 229376))
            a("s_add_u32 m0, s79, %d" % (sb + 32768))
            a("buffer_load_dwordx4 v3, s[12:15], s81 offen lds")
            a("s_add_u32 m0, s79, %d" % (sb + 40960))
            a("buffer_load_dwordx4 v3, s[16:19], s81 offen lds")
        vmt.add("S%d" % ks, 2)
    vmt = Vm(a)
    for part in (2, 0, 1):
        issue_part(0, part)
    a("""
    s_lshr_b32 s82, s36, 1
    s_and_b32 s83, s36, 1
    s_lshl_b32 s84, s82, 13
    v_and_b32 v8, 31, v1
    v_lshlrev_b32 v8, 7, v8
    v_add_u32 v8, s84, v8
    v_lshrrev_b32 v9, 5, v1
    v_lshrrev_b32 v10, 1, v1
    v_and_b32 v10, 7, v10
    """)
    for j in range(4):
        a("v_add_u32 v11, %d, v9" % (2 * j))
        a("v_xor_b32 v11, v11, v10")
        a("v_lshl_add_u32 v%d, v11, 4, v8" % (14 + j))
        a("v_add_u32 v%d, 49152, v%d" % (18 + j, 14 + j))
        a("v_add_u32 v%d, 98304, v%d" % (22 + j, 14 + j))
    a("""
    v_and_b32 v8, 15, v1
    v_lshrrev_b32 v9, 2, v8
    v_lshrrev_b32 v10, 5, v1
    v_lshl_add_u32 v9, v10, 3, v9
    v_lshlrev_b32 v9, 7, v9
    v_lshrrev_b32 v10, 4, v1
    v_and_b32 v10, 1, v10
    v_lshlrev_b32 v10, 1, v10
    v_lshrrev_b32 v11, 1, v8
    v_and_b32 v11, 1, v11
    v_add_u32 v10, v10, v11
    s_lshl_b32 s84, s83, 2
    v_add_u32 v10, s84, v10
    v_lshrrev_b32 v11, 3, v8
    v_lshlrev_b32 v11, 2, v11
    v_xor_b32 v10, v10, v11
    v_lshl_add_u32 v9, v10, 4, v9
    v_and_b32 v11, 1, v8
    v_lshl_add_u32 v26, v11, 3, v9
    v_add_u32 v27, 49152, v26
    v_add_u32 v28, 98304, v26
    """)
    ACC = 160
    for part in (2, 0, 1):
        issue_part(1, part)
    k1_side_loads(a); vmt.add("SL", 10)
    k1_gf_compute(a)
    stamp(a, 1)
    FR = [32, 48]
    def reads(g):
        st, j = (g >> 2) % 3, g & 3
        f = FR[g & 1]
        for u in range(2):
            for rd in range(2):
                a("ds_read_b64_tr_b16 v[%d:%d], v%d offset:%d" % (f + 4 * u + 2 * rd, f + 4 * u + 2 * rd + 1, 26 + st,
                                                               32768 + 8192 * u + (16 * j + 4 * rd) * 128))
        for tt in range(2):
            a("ds_read_b128 v[%d:%d], v%d offset:%d" % (f + 8 + 4 * tt, f + 11 + 4 * tt, 14 + 4 * st + j, tt * 4096))
    def mfmas(g):
        f = FR[g & 1]
        if "nomfma" in EXP: return
        for u in range(2):
            for tt in range(2):
                c = ACC + 32 * u + 16 * tt
                a("v_mfma_f32_32x32x16_bf16 v[%d:%d], v[%d:%d], v[%d:%d], %s" %
                  (c, c + 15, f + 4 * u, f + 4 * u + 3, f + 8 + 4 * tt, f + 11 + 4 * tt, "0" if g == 0 else "v[%d:%d]" % (c, c + 15)))
    vmt.wait("S0")
    stamp(a, 3)
    a("s_barrier")
    stamp(a, 4)
    reads(0)
    for g in range(28):
        i, j = g >> 2, g & 3
        if j == 3 and i < 6:
            vmt.wait("S%d" % (i + 1), " lgkmcnt(0)")
            a("s_barrier")
            reads(g + 1)
            mfmas(g)
        elif g == 27:
            a("s_waitcnt lgkmcnt(0)")
            mfmas(g)
        else:
            reads(g + 1)
            a("s_waitcnt lgkmcnt(6)")
            mfmas(g)
            if g == 8:
                k1_side_compute_store(a); vmt.add("ST", 3)
            if i + 2 <= 6:
                if "early" in EXP:
                    if j == 0:
                        for part in (2, 0, 1):
                            issue_part(i + 2, part)
                else:
                    issue_part(i + 2, (2, 0, 1)[j])
            if g == PFG:
                k1_prefetch_wd(a); vmt.add("PF")
    stamp(a, 5)
    c0 = -2.0 * 0.7978845608028654 * LOG2E
    c1 = c0 * 0.044715
    a("v_mov_b32 v64, %s" % fl(c0))
    a("""
    s_lshl_b32 s84, s74, 3
    s_lshl_b32 s85, s82, 1
    s_add_u32 s84, s84, s85
    s_mul_i32 s84, s84, 112
    s_lshl_b32 s85, s75, 1
    s_add_u32 s85, s85, s83
    s_lshl_b32 s85, s85, 1
    s_add_u32 s84, s84, s85
    s_lshl_b32 s84, s84, 10
    s_add_u32 s85, s84, 114688
    v_lshlrev_b32 v65, 4, v1
    """)
    for tt in range(2):
        G = ACC + 16 * tt; U = ACC + 32 + 16 * tt
        for r0 in range(0, 16, 4):
            T = [66 + k for k in range(4)]
            Y = [70 + k for k in range(4)]
            for k in range(4): a("v_mul_f32 v%d, v%d, v%d" % (T[k], G + r0 + k, G + r0 + k))
            for k in range(4): a("v_fmamk_f32 v%d, v%d, %s, v64" % (T[k], T[k], fl(c1)))
            for k in range(4): a("v_mul_f32 v%d, v%d, v%d" % (T[k], T[k], G + r0 + k))
            for k in range(4): a("v_exp_f32 v%d, v%d" % (T[k], T[k]))
            for k in range(4): a("v_mul_f32 v%d, v%d, v%d" % (Y[k], G + r0 + k, U + r0 + k))
            for k in range(4): a("v_add_f32 v%d, 1.0, v%d" % (T[k], T[k]))
            for k in range(4): a("v_rcp_f32 v%d, v%d" % (T[k], T[k]))
            for k in range(4): a("v_mul_f32 v%d, v%d, v%d" % (Y[k], Y[k], T[k]))
            o = 76 + 8 * tt + r0 // 2
            a("v_cvt_pk_bf16_f32 v%d, v%d, v%d" % (o, Y[0], Y[1]))
            a("v_cvt_pk_bf16_f32 v%d, v%d, v%d" % (o + 1, Y[2], Y[3]))
        o = 76 + 8 * tt
        so = "s84" if tt == 0 else "s85"
        a("buffer_store_dwordx4 v[%d:%d], v65, s[20:23], %s offen%s" % (o, o + 3, so, HST))
        a("buffer_store_dwordx4 v[%d:%d], v65, s[20:23], %s offen offset:1024%s" % (o + 4, o + 7, so, HST))
    stamp(a, 6)
    stamp_flush(a, 0, 7)
    dbg_time(a, 1)
    a("s_endpgm")

def gen_k1_dft(a):
    a("""
    s_sub_u32 s72, s2, 224
    s_lshr_b32 s73, s72, 3
    s_and_b32 s75, s73, 1
    s_lshr_b32 s73, s73, 1
    s_and_b32 s74, s72, 1
    s_lshl_b32 s74, s74, 3
    s_add_u32 s74, s74, s73
    s_lshr_b32 s73, s72, 1
    s_and_b32 s73, s73, 3
    s_lshl_b32 s73, s73, 1
    s_add_u32 s74, s74, s73
    """)
    a("""
    s_lshl_b32 s76, s74, 2
    s_lshr_b32 s77, s36, 1
    s_add_u32 s76, s76, s77
    s_mul_i32 s76, s76, 896
    s_and_b32 s77, s36, 1
    s_mul_i32 s77, s77, 917504
    s_add_u32 s76, s76, s77
    v_lshrrev_b32 v8, 3, v1
    v_mul_u32_u24 v9, 57344, v8
    v_add_u32 v9, s76, v9
    v_lshrrev_b32 v10, 4, v1
    v_and_b32 v11, 7, v1
    v_xor_b32 v12, v11, v10
    v_xor_b32 v13, 4, v12
    v_lshl_add_u32 v4, v12, 4, v9
    v_lshl_add_u32 v5, v13, 4, v9
    v_add_u32 v5, 458752, v5
    s_lshl_b32 s78, s36, 11
    """)
    def issue_stage(ks):
        a("s_mov_b32 s80, %d" % (ks * 128))
        for q in range(2):
            a("s_add_u32 m0, s78, %d" % (ks * 16384 + q * 1024))
            a("buffer_load_dwordx4 v%d, s[8:11], s80 offen lds" % (4 + q))
    issue_stage(0)
    if "pf1" in EXP:
        k1_prefetch_in(a, "C")
    k1_side_loads(a)
    a("""
    v_and_b32 v8, 31, v1
    v_lshlrev_b32 v8, 7, v8
    v_lshrrev_b32 v9, 5, v1
    v_lshrrev_b32 v10, 1, v1
    v_and_b32 v10, 7, v10
    """)
    for j in range(4):
        a("v_add_u32 v11, %d, v9" % (2 * j))
        a("v_xor_b32 v11, v11, v10")
        a("v_lshl_add_u32 v%d, v11, 4, v8" % (14 + j))
        a("v_add_u32 v%d, 65536, v%d" % (18 + j, 14 + j))
    a("""
    s_lshl_b32 s82, s75, 7
    s_lshl_b32 s83, s36, 4
    s_add_u32 s82, s82, s83
    v_and_b32 v8, 15, v1
    v_add_u32 v22, s82, v8
    v_cvt_f32_u32 v23, v22
    v_mul_f32 v23, %s, v23
    v_lshrrev_b32 v9, 5, v1
    v_lshlrev_b32 v9, 3, v9
    v_cvt_f32_u32 v9, v9
    v_lshrrev_b32 v10, 4, v1
    v_and_b32 v10, 1, v10
    v_cvt_f32_u32 v11, v10
    v_mul_f32 v11, 0.5, v11
    v_mul_f32 v11, 0.5, v11
    v_fma_f32 v24, v9, v23, v11
    """ % fl(1.0 / 448.0))
    a("""
    v_and_b32 v9, 31, v1
    v_and_b32 v11, 15, v9
    v_lshrrev_b32 v9, 4, v9
    v_lshl_add_u32 v9, v11, 1, v9
    v_mul_u32_u24 v25, 272, v9
    v_lshrrev_b32 v9, 5, v1
    v_lshl_add_u32 v25, v9, 4, v25
    s_mul_i32 s85, s36, 8704
    v_add_u32 v25, s85, v25
    v_lshrrev_b32 v9, 4, v1
    v_mul_u32_u24 v26, 272, v9
    v_lshl_add_u32 v26, v8, 4, v26
    v_add_u32 v26, s85, v26
    v_lshlrev_b32 v27, 12, v9
    v_lshl_add_u32 v27, v8, 4, v27
    s_lshl_b32 s84, s82, 13
    s_lshl_b32 s85, s74, 8
    s_add_u32 s84, s84, s85
    s_add_u32 s84, s84, 0x%x
    v_cos_f32 v28, v23
    v_add_f32 v28, v28, v28
    """ % PF_OFF)
    ACC = 160
    for r in range(64):
        a("v_mov_b32 v%d, 0" % (ACC + r))
    k1_gf_compute(a)
    issue_stage(1)
    issue_stage(2)
    stamp(a, 1)
    a("s_waitcnt vmcnt(4)")
    stamp(a, 2)
    k1_side_compute_store(a)
    FR = [32, 48]
    FF = [64, 68]
    def reads(g):
        st, j = g >> 2, g & 3
        f = FR[g & 1]
        for tt in range(4):
            off = st * 16384 + tt * 4096
            base = 14 + j
            if off >= 65536:
                off -= 65536; base = 18 + j
            a("ds_read_b128 v[%d:%d], v%d offset:%d" % (f + 4 * tt, f + 4 * tt + 3, base, off))
    def fgen(g):
        f = FF[g & 1]
        for i in range(2):
            a("v_fmamk_f32 v%d, v23, %s, v24" % (72 + i, fl(float(16 * g + i))))
        for i in range(2):
            a("v_cos_f32 v%d, v%d" % (72 + i, 72 + i))
        for i in range(2, 8):
            a("v_fma_f32 v%d, v28, v%d, -v%d" % (72 + i, 71 + i, 70 + i))
        for i in range(4):
            a("v_cvt_pk_bf16_f32 v%d, v%d, v%d" % (f + i, 72 + 2 * i, 73 + 2 * i))
    def mfmas(g):
        f = FR[g & 1]; ff = FF[g & 1]
        for tt in range(4):
            c = ACC + 16 * tt
            a("v_mfma_f32_32x32x16_bf16 v[%d:%d], v[%d:%d], v[%d:%d], v[%d:%d]" %
              (c, c + 15, f + 4 * tt, f + 4 * tt + 3, ff, ff + 3, c, c + 15))
    vm = {0: 7, 1: 7, 2: 7, 3: 4, 4: 4, 5: 3, 6: 1}
    fgen(0)
    a("s_waitcnt vmcnt(%d)" % vm[0])
    stamp(a, 3)
    a("s_barrier")
    stamp(a, 4)
    reads(0)
    for g in range(28):
        i, j = g >> 2, g & 3
        if j == 3 and i < 6:
            a("s_waitcnt vmcnt(%d)" % vm[i + 1])
            a("s_barrier")
            reads(g + 1)
            a("s_waitcnt lgkmcnt(4)")
            mfmas(g)
            fgen(g + 1)
        elif g == 27:
            a("s_waitcnt lgkmcnt(0)")
            mfmas(g)
        else:
            reads(g + 1)
            a("s_waitcnt lgkmcnt(4)")
            mfmas(g)
            fgen(g + 1)
            if j == 0 and i + 3 <= 6:
                issue_stage(i + 3)
            if g == 17:
                k1_prefetch_wd(a)
    stamp(a, 5)
    for tt in range(4):
        c = ACC + 16 * tt
        o = 32 + 8 * tt
        for k in range(8):
            a("v_cvt_pk_bf16_f32 v%d, v%d, v%d" % (o + k, c + 2 * k, c + 2 * k + 1))
        a("ds_write_b128 v25, v[%d:%d] offset:%d" % (o, o + 3, tt * 64))
        a("ds_write_b128 v25, v[%d:%d] offset:%d" % (o + 4, o + 7, tt * 64 + 32))
    a("s_waitcnt lgkmcnt(0)")
    for m in range(8):
        a("ds_read_b128 v[%d:%d], v26 offset:%d" % (64 + 4 * m, 67 + 4 * m, m * 4 * 272))
    for m in range(8):
        a("s_waitcnt lgkmcnt(%d)" % (7 - m))
        a("s_add_u32 s85, s84, %d" % (m * 16384))
        a("buffer_store_dwordx4 v[%d:%d], v27, s[20:23], s85 offen sc0 sc1" % (64 + 4 * m, 67 + 4 * m))
    stamp(a, 6)
    stamp_flush(a, 0, 7)
    dbg_time(a, 1)
    a("s_endpgm")


def mfma(a, c, A, B):
    a("v_mfma_f32_32x32x16_bf16 v[%d:%d], v[%d:%d], v[%d:%d], v[%d:%d]" % (c, c + 15, A, A + 3, B, B + 3, c, c + 15))

def gen_k2(a):
    a.raw(kernel_header(K2))
    a("""
    s_cmp_ge_u32 s2, 225
    s_cbranch_scc1 K2_END
    s_load_dwordx2 s[4:5], s[0:1], 48
    s_load_dwordx2 s[60:61], s[0:1], 64
    s_load_dwordx2 s[6:7], s[0:1], 80
    v_and_b32 v1, 63, v0
    v_lshrrev_b32 v2, 6, v0
    v_readfirstlane_b32 s36, v2
    s_waitcnt lgkmcnt(0)
    """)
    srd(a, 8, 4, 1605632)
    srd(a, 20, 6, WS_SIZE)
    srd(a, 12, 60, 1835008)
    stamp(a, 0)
    dbg_setup(a, True)
    dbg_time(a, 2, neg=True)
    tile_map_64(a)
    a("""
    s_lshl_b32 s78, s36, 14
    s_cmp_eq_u32 s36, 7
    s_cbranch_scc1 K2_FFT
    s_cmp_ge_u32 s2, 224
    s_cbranch_scc1 K2_END
    """)
    gen_k2_down(a)
    a("K2_FFT:")
    gen_k2_fft(a)
    a("K2_END:")
    a("s_endpgm")

def tile_map_64(a):
    a("""
    s_and_b32 s72, s2, 7
    s_lshl_b32 s72, s72, 2
    s_lshr_b32 s73, s2, 3
    s_and_b32 s74, s73, 3
    s_add_u32 s74, s74, s72
    s_lshr_b32 s75, s2, 5
    """)

def tr_addr(a, dst, rowmul_h, chunk_sgpr):
    sh = {4: 2, 8: 3}[rowmul_h]
    a("""
    v_and_b32 v8, 15, v1
    v_lshrrev_b32 v9, 2, v8
    v_lshrrev_b32 v10, 5, v1
    v_lshl_add_u32 v9, v10, %d, v9
    v_lshlrev_b32 v9, 7, v9
    v_lshrrev_b32 v10, 4, v1
    v_and_b32 v10, 1, v10
    v_lshlrev_b32 v10, 1, v10
    v_lshrrev_b32 v11, 1, v8
    v_and_b32 v11, 1, v11
    v_add_u32 v10, v10, v11
    v_add_u32 v10, %s, v10
    v_lshrrev_b32 v11, 3, v8
    v_lshlrev_b32 v11, 2, v11
    v_xor_b32 v10, v10, v11
    v_lshl_add_u32 v9, v10, 4, v9
    v_and_b32 v11, 1, v8
    v_lshl_add_u32 v%d, v11, 3, v9
    """ % (sh, chunk_sgpr, dst))

def k2_tail_prep(a):
    a("""
    v_lshlrev_b32 v7, 4, v1
    v_and_b32 v12, 31, v1
    v_lshrrev_b32 v13, 5, v1
    s_lshl_b32 s80, s75, 6
    v_add_u32 v208, s80, v12
    v_cvt_f32_u32 v208, v208
    v_mul_f32 v208, %s, v208
    v_add_f32 v209, %s, v208
    s_and_b32 s80, s36, 3
    s_lshl_b32 s80, s80, 6
    v_lshlrev_b32 v210, 3, v13
    v_add_u32 v210, s80, v210
    v_cvt_f32_u32 v210, v210
    s_cmp_ge_u32 s36, 4
    s_cselect_b32 s81, 0x3e800000, 0
    s_cselect_b32 s82, 0, 0.5
    v_mov_b32 v211, s81
    v_mov_b32 v212, s82
    v_fma_f32 v213, v210, v208, v211
    v_fma_f32 v214, v210, v209, v211
    v_cos_f32 v215, v208
    v_cos_f32 v216, v209
    v_add_f32 v215, v215, v215
    v_add_f32 v216, v216, v216
    v_mov_b32 v217, %s
    v_mov_b32 v218, 0
    v_mov_b32 v219, 1.0
    """ % (fl(1.0 / 448.0), fl(32.0 / 448.0), fl(224.0)))
    F = 220; SCL = 228
    for m in range(4):
        idx = [0] if m == 0 else list(range(8)) if m >= 2 else []
        for i in idx:
            a("v_add_f32 v236, %s, v210" % fl(float(16 * m + i)))
            a("v_cmp_lt_f32 vcc, v217, v236")
            a("v_cndmask_b32 v%d, v219, v218, vcc" % (SCL + i))
            a("v_cmp_eq_f32 vcc, v217, v236")
            a("v_cndmask_b32 v%d, v%d, v212, vcc" % (SCL + i, SCL + i))
            a("v_cmp_eq_f32 vcc, 0, v236")
            a("v_cndmask_b32 v%d, v%d, v212, vcc" % (SCL + i, SCL + i))
        for dtl in range(2):
            d = 96 + 4 * (4 * dtl + m)
            for i in range(2):
                a("v_fmamk_f32 v%d, v%d, %s, v%d" % (F + i, 208 + dtl, fl(float(16 * m + i)), 213 + dtl))
            for i in range(2):
                a("v_cos_f32 v%d, v%d" % (F + i, F + i))
            for i in range(2, 8):
                a("v_fma_f32 v%d, v%d, v%d, -v%d" % (F + i, 215 + dtl, F + i - 1, F + i - 2))
            for i in idx:
                a("v_mul_f32 v%d, v%d, v%d" % (F + i, F + i, SCL + i))
            for i in range(4):
                a("v_cvt_pk_bf16_f32 v%d, v%d, v%d" % (d + i, F + 2 * i, F + 2 * i + 1))
    a("""
    s_and_b32 s83, s36, 3
    s_lshl_b32 s83, s83, 6
    v_lshrrev_b32 v8, 3, v1
    v_add_u32 v8, s83, v8
    v_lshrrev_b32 v10, 4, v1
    v_and_b32 v10, 1, v10
    v_lshlrev_b32 v10, 2, v10
    v_and_b32 v11, 7, v1
    v_xor_b32 v10, v11, v10
    v_lshlrev_b32 v10, 4, v10
    s_lshr_b32 s84, s36, 2
    s_mul_i32 s84, s84, %d
    s_lshl_b32 s85, s74, 7
    s_add_u32 s84, s84, s85
    s_add_u32 s84, s84, 0x%x
    v_mov_b32 v15, 224
    s_mov_b32 s85, 0x%x
    """ % (225 * 4096, ZT_OFF, CNT_OFF))
    for b in range(8):
        a("v_add_u32 v9, %d, v8" % (8 * b))
        a("v_min_u32 v9, v9, v15")
        a("v_lshl_add_u32 v%d, v9, 12, v10" % (82 + b))
    tr_addr(a, 90, 8, "0")
    a("v_add_u32 v90, s78, v90")
    a("v_xor_b32 v91, 64, v90")

def k2_gate_load(a, d=80):
    a("""
    v_and_b32 v14, 31, v1
    v_lshlrev_b32 v14, 2, v14
    s_lshl_b32 s86, s74, 8
    s_add_u32 s86, s86, 0x%x
    buffer_load_dword v%d, v14, s[20:23], s86 offen
    buffer_load_dword v%d, v14, s[20:23], s86 offen offset:128
    """ % (GATE_OFF, d, d + 1))

def k2_gate_fin(a):
    a("""
    v_sub_f32 v92, 1.0, v80
    v_sub_f32 v93, 1.0, v81
    v_mul_f32 v80, %s, v80
    v_mul_f32 v81, %s, v81
    """ % (fl(2.0 / (2048.0 * 448.0)), fl(2.0 / (2048.0 * 448.0))))

NSTEP = 16
DEPTH = int(os.environ.get("DEPTH", "6"))
def gen_k2_down(a):
    a("""
    v_lshrrev_b32 v8, 3, v1
    v_mul_u32_u24 v9, 896, v8
    v_lshrrev_b32 v10, 4, v1
    v_and_b32 v10, 1, v10
    v_lshlrev_b32 v10, 2, v10
    v_and_b32 v11, 7, v1
    v_xor_b32 v10, v11, v10
    v_lshl_add_u32 v3, v10, 4, v9
    s_lshl_b32 s76, s75, 7
    s_mul_i32 s77, s36, 229376
    s_add_u32 s76, s76, s77
    v_add_u32 v3, s76, v3
    s_mul_i32 s76, s74, 224
    s_lshl_b32 s77, s36, 4
    s_add_u32 s76, s76, s77
    s_lshl_b32 s76, s76, 10
    v_lshlrev_b32 v4, 4, v1
    v_add_u32 v4, s76, v4
    """)
    HF = 16; AF = [128, 136]; ACC = 144
    def hreg(s):
        return HF + 8 * (s % 8)
    def issue(s):
        slot = s % 8
        a("s_mov_b32 s80, %d" % (s * 14336))
        a("s_mov_b32 s81, %d" % (s * 14336 + 7168))
        a("s_mov_b32 s82, %d" % (H_OFF + s * 1024))
        a("s_mov_b32 s83, %d" % (H_OFF + s * 1024 + 114688))
        a("s_add_u32 m0, s78, %d" % (slot * 2048))
        a("buffer_load_dwordx4 v3, s[8:11], s80 offen lds")
        a("s_add_u32 m0, s78, %d" % (slot * 2048 + 1024))
        a("buffer_load_dwordx4 v3, s[8:11], s81 offen lds")
        a("buffer_load_dwordx4 v[%d:%d], v4, s[20:23], s82 offen" % (hreg(s), hreg(s) + 3))
        a("buffer_load_dwordx4 v[%d:%d], v4, s[20:23], s83 offen" % (hreg(s) + 4, hreg(s) + 7))
    if "nobar" not in EXP:
        a("s_barrier")
    if "nodown" in EXP:
        a("s_branch K2_TAIL")
    k2_gate_load(a)
    for s in range(DEPTH):
        issue(s)
    tr_addr(a, 5, 4, "0")
    a("v_add_u32 v5, s78, v5")
    a("v_xor_b32 v6, 64, v5")
    issued = [DEPTH]
    def wait_step(k):
        a("s_waitcnt vmcnt(%d)" % (4 * (issued[0] - k - 1)))
    def reads(s):
        f = AF[s & 1]; slot = s % 8
        for dtl in range(2):
            for rd in range(2):
                a("ds_read_b64_tr_b16 v[%d:%d], v%d offset:%d" % (f + 4 * dtl + 2 * rd, f + 4 * dtl + 2 * rd + 1, 5 + dtl,
                                                               slot * 2048 + rd * 1024))
    stamp(a, 1)
    wait_step(0)
    stamp(a, 2)
    k2_gate_fin(a)
    reads(0)
    for s in range(NSTEP):
        if s + 1 < NSTEP:
            wait_step(s + 1); reads(s + 1)
            a("s_waitcnt lgkmcnt(4)")
        else:
            a("s_waitcnt lgkmcnt(0)")
        f = AF[s & 1]
        for dtl in range(2):
            for tt in range(2):
                c = ACC + 16 * (2 * dtl + tt); A = f + 4 * dtl; B = hreg(s) + 4 * tt
                a("v_mfma_f32_32x32x16_bf16 v[%d:%d], v[%d:%d], v[%d:%d], %s" %
                  (c, c + 15, A, A + 3, B, B + 3, "0" if s == 0 else "v[%d:%d]" % (c, c + 15)))
        if s + DEPTH < NSTEP:
            issue(s + DEPTH); issued[0] += 1
        if s + DEPTH == NSTEP - 1:
            k2_tail_prep(a)
    a("K2_TAIL:")
    stamp(a, 3)
    a("""
    s_cmp_lg_u32 s36, 7
    s_cbranch_scc1 K2_GO
    v_lshlrev_b32 v228, 8, v1
    K2_POLL:
    buffer_load_dword v224, v228, s[20:23], s85 offen sc1
    buffer_load_dword v225, v228, s[20:23], s85 offen offset:64 sc1
    buffer_load_dword v226, v228, s[20:23], s85 offen offset:128 sc1
    buffer_load_dword v227, v228, s[20:23], s85 offen offset:192 sc1
    s_waitcnt vmcnt(0)
    v_and_b32 v224, v224, v225
    v_and_b32 v226, v226, v227
    v_and_b32 v224, v224, v226
    v_cmp_eq_u32 vcc, 1, v224
    s_cmp_eq_u64 vcc, exec
    s_cbranch_scc1 K2_GO
    s_sleep 4
    s_branch K2_POLL
    K2_GO:
    """)
    for t4 in range(4):
        for r in range(16):
            a("v_mul_f32 v%d, v%d, v%d" % (ACC + 16 * t4 + r, ACC + 16 * t4 + r, 92 + (t4 & 1)))
    a("s_barrier")
    stamp(a, 4)
    for b in range(8):
        a("s_add_u32 m0, s78, %d" % (b * 1024))
        a("buffer_load_dwordx4 v%d, s[20:23], s84 offen sc0 sc1 lds" % (82 + b))
    AA = 16
    ZF = [128, 132, 136, 140, 208, 212, 216, 220]
    for m in range(4):
        a("s_waitcnt vmcnt(%d)" % (6 - 2 * m))
        for tt in range(2):
            f = ZF[2 * m + tt]
            for rd in range(2):
                a("ds_read_b64_tr_b16 v[%d:%d], v%d offset:%d" % (f + 2 * rd, f + 2 * rd + 1, 90 + tt, (16 * m + 4 * rd) * 128))
    for m in range(4):
        a("s_waitcnt lgkmcnt(%d)" % (12 - 4 * m))
        for dtl in range(2):
            for tt in range(2):
                c = AA + 16 * (2 * dtl + tt); A = 96 + 4 * (4 * dtl + m); B = ZF[2 * m + tt]
                a("v_mfma_f32_32x32x16_bf16 v[%d:%d], v[%d:%d], v[%d:%d], %s" %
                  (c, c + 15, A, A + 3, B, B + 3, "0" if m == 0 else "v[%d:%d]" % (c, c + 15)))
    for t4 in range(4):
        for r in range(16):
            a("v_fma_f32 v%d, v%d, v%d, v%d" % (ACC + 16 * t4 + r, AA + 16 * t4 + r, 80 + (t4 & 1), ACC + 16 * t4 + r))
    stamp(a, 5)
    a("""
    v_add_u32 v8, s78, v7
    s_lshl_b32 s79, s36, 11
    v_add_u32 v9, s79, v7
    v_add_u32 v10, 65536, v9
    """)
    for p in range(8):
        for q in range(2):
            c = ACC + 8 * p + 4 * q
            a("ds_write_b128 v8, v[%d:%d] offset:%d" % (c, c + 3, p * 2048 + q * 1024))
    a("s_waitcnt lgkmcnt(0)")
    a("s_barrier")
    for w2 in range(8):
        for q in range(2):
            d = 16 + 8 * w2 + 4 * q
            a("ds_read_b128 v[%d:%d], v%d offset:%d" % (d, d + 3, 9 if w2 < 4 else 10, (w2 & 3) * 16384 + q * 1024))
    a("""
    s_lshr_b32 s80, s36, 1
    s_and_b32 s81, s80, 1
    s_lshr_b32 s80, s80, 1
    s_lshl_b32 s82, s74, 1
    s_add_u32 s82, s82, s81
    s_mul_i32 s82, s82, 896
    s_lshl_b32 s83, s75, 1
    s_add_u32 s83, s83, s80
    s_lshl_b32 s83, s83, 6
    s_add_u32 s82, s82, s83
    s_and_b32 s83, s36, 1
    s_lshl_b32 s83, s83, 5
    s_add_u32 s82, s82, s83
    v_mul_u32_u24 v11, 57344, v12
    v_lshl_add_u32 v11, v13, 4, v11
    """)
    for w2 in range(1, 8):
        a("s_waitcnt lgkmcnt(%d)" % (2 * (7 - w2)))
        for k in range(8):
            a("v_add_f32 v%d, v%d, v%d" % (16 + k, 16 + k, 16 + 8 * w2 + k))
    for k in range(4):
        a("v_cvt_pk_bf16_f32 v%d, v%d, v%d" % (80 + k, 16 + 2 * k, 17 + 2 * k))
    a("v_permlane32_swap_b32 v80, v82")
    a("v_permlane32_swap_b32 v81, v83")
    a("buffer_store_dwordx4 v[80:83], v11, s[12:15], s82 offen")
    stamp(a, 6)
    stamp_flush(a, 1, 7)
    dbg_time(a, 3)
    a("s_endpgm")

def gen_k2_fft(a):
    if "noprio" not in EXP:
        a("s_setprio 3")
    a("""
    s_lshl_b32 s73, s2, 13
    s_add_u32 s66, s73, 0x%x
    s_add_u32 s67, s66, 4096
    s_add_u32 s76, s73, 0x%x
    v_and_b32 v3, 31, v1
    v_lshrrev_b32 v4, 5, v1
    v_lshlrev_b32 v2, 6, v3
    v_lshl_add_u32 v2, v4, 4, v2
    v_lshlrev_b32 v5, 8, v3
    v_lshl_add_u32 v5, v4, 4, v5
    v_lshlrev_b32 v7, 4, v1
    v_add_u32 v6, s78, v7
    """ % (PF_OFF, WT_OFF))
    CR, CI, NCI = 16, 24, 32
    ER, EI = 40, 72
    WV = 104
    ACC = 136
    FA, FB, FC = 200, 216, 232
    PR, PI = 200, 216
    k2_gate_load(a, 8)
    for c, base, so in ((0, PR, "s66"), (1, PI, "s67")):
        for T in range(2):
            for j in range(2):
                d = base + 4 * (2 * T + j)
                a("buffer_load_dwordx4 v[%d:%d], v2, s[20:23], %s offen offset:%d" % (d, d + 3, so, T * 2048 + j * 32))
    for e in range(6):
        if e % 4 == 0:
            a("s_mov_b32 s79, 0x%x" % (TB_OFF + e * 1024))
        a("buffer_load_dwordx4 v[%d:%d], v7, s[20:23], s79 offen offset:%d" % (16 + 4 * e, 19 + 4 * e, (e % 4) * 1024))
    def tw_dma(c):
        a("s_add_u32 m0, s78, %d" % (c * 1024))
        a("s_mov_b32 s79, 0x%x" % (TB_OFF + (22 + c) * 1024))
        a("buffer_load_dwordx4 v7, s[20:23], s79 offen lds")
    for e in range(6, 22):
        if (e - 6) % 4 == 0:
            a("s_mov_b32 s79, 0x%x" % (TB_OFF + e * 1024))
        a("buffer_load_dwordx4 v[%d:%d], v7, s[20:23], s79 offen offset:%d" % (16 + 4 * e, 19 + 4 * e, ((e - 6) % 4) * 1024))
    for U in range(2):
        for q in range(4):
            d = WV + 4 * (4 * U + q)
            a("buffer_load_dwordx4 v[%d:%d], v5, s[20:23], s76 offen offset:%d" % (d, d + 3, U * 128 + q * 32))
    if "nobar" not in EXP:
        a("s_barrier")
    if "nofft" in EXP:
        a("s_waitcnt vmcnt(0)")
        a("s_branch K2_FFT_SKIP")
    stamp(a, 1)
    RE = [ACC, ACC + 16]; IM = [ACC + 32, ACC + 48]
    first = set()
    def MF(c, A, B):
        z = c not in first
        first.add(c)
        return "v_mfma_f32_32x32x16_bf16 v[%d:%d], v[%d:%d], v[%d:%d], %s" % (
            c, c + 15, A, A + 3, B, B + 3, "0" if z else "v[%d:%d]" % (c, c + 15))
    def merge(M, V, lead=1):
        n = len(M)
        k = 0
        for idx, m in enumerate(M):
            a(m)
            if idx + 1 < lead:
                continue
            tgt = (len(V) * (idx + 2 - lead)) // (n + 1 - lead)
            while k < tgt:
                a(V[k]); k += 1
        while k < len(V):
            a(V[k]); k += 1
    TWB = [248, 8]
    def twiddle(tbl, T, sign):
        L = []
        th, ph = (14, 15) if (tbl == 0 or T == 0) else (5, 6)
        for q in range(4):
            t = 248
            for k in range(4):
                kk = (32 * T if tbl == 0 else 0) + 8 * q + k
                L.append("v_fmamk_f32 v%d, v%d, %s, v%d" % (t + k, th, fl(float(kk)), ph))
            for k in range(4):
                L.append("v_sin_f32 v%d, v%d" % (t + 4 + k, t + k))
            for k in range(4):
                L.append("v_cos_f32 v%d, v%d" % (t + k, t + k))
            for k in range(4):
                xr, xi = RE[T] + 4 * q + k, IM[T] + 4 * q + k
                c, s = t + k, t + 4 + k
                L.append("v_mul_f32 v7, v%d, v%d" % (xr, s))
                L.append("v_mul_f32 v%d, v%d, v%d" % (s, xi, s))
                if sign < 0:
                    L.append("v_fma_f32 v%d, v%d, v%d, v%d" % (xr, xr, c, s))
                    L.append("v_fma_f32 v%d, v%d, v%d, -v7" % (xi, xi, c))
                else:
                    L.append("v_fma_f32 v%d, v%d, v%d, -v%d" % (xr, xr, c, s))
                    L.append("v_fma_f32 v%d, v%d, v%d, v7" % (xi, xi, c))
        return L
    def pack(dst, tiles, T, neg=False):
        n = "-" if neg else ""
        return ["v_cvt_pk_bf16_f32 v%d, %sv%d, %sv%d" % (dst + 8 * T + k, n, tiles[T] + 2 * k, n, tiles[T] + 2 * k + 1)
                for k in range(8)]
    def wmul(U):
        L = []
        for r in range(16):
            w = WV + 16 * U + r
            xr, xi = RE[U] + r, IM[U] + r
            L += ["v_lshlrev_b32 v10, 16, v%d" % w, "v_and_b32 v11, 0xffff0000, v%d" % w,
                  "v_mul_f32 v12, v%d, v11" % xr, "v_mul_f32 v13, v%d, v11" % xi,
                  "v_fma_f32 v%d, v%d, v10, -v13" % (xr, xr), "v_fma_f32 v%d, v%d, v10, v12" % (xi, xi)]
        return L
    def stepA(T):
        M = []
        for j in range(2):
            M += [MF(RE[T], PR + 4 * (2 * T + j), CR + 4 * j), MF(IM[T], PR + 4 * (2 * T + j), CI + 4 * j)]
        for j in range(2):
            M += [MF(RE[T], PI + 4 * (2 * T + j), NCI + 4 * j), MF(IM[T], PI + 4 * (2 * T + j), CR + 4 * j)]
        return M
    def stepB(U, jjs):
        M = []
        for jj in jjs:
            e = 4 * (4 * U + jj)
            M += [MF(RE[U], ER + e, FA + 4 * jj), MF(IM[U], EI + e, FA + 4 * jj),
                  MF(RE[U], EI + e, FC + 4 * jj), MF(IM[U], ER + e, FB + 4 * jj)]
        return M
    def stepC(V, jjs):
        M = []
        for jj in jjs:
            e = 4 * (4 * V + jj)
            M += [MF(RE[V], FA + 4 * jj, ER + e), MF(IM[V], FB + 4 * jj, ER + e),
                  MF(RE[V], FB + 4 * jj, EI + e), MF(IM[V], FC + 4 * jj, EI + e)]
        return M
    def stepD(V):
        M = []
        for j in range(2):
            M += [MF(RE[V], CR + 4 * j, FA + 4 * (2 * V + j)), MF(IM[V], CR + 4 * j, FB + 4 * (2 * V + j))]
        for j in range(2):
            M += [MF(RE[V], CI + 4 * j, FB + 4 * (2 * V + j)), MF(IM[V], NCI + 4 * j, FA + 4 * (2 * V + j))]
        return M
    def zout(V):
        L = []
        for c, tiles, so, o in ((0, RE, "s77", WV + 16 * V), (1, IM, "s79", WV + 16 * V + 8)):
            t = tiles[V]
            pos = {0: 0, 2: 2, 1: 4, 3: 6}
            for q in range(4):
                L.append("v_cvt_pk_bf16_f32 v%d, v%d, v%d" % (o + pos[q], t + 4 * q, t + 4 * q + 1))
                L.append("v_cvt_pk_bf16_f32 v%d, v%d, v%d" % (o + pos[q] + 1, t + 4 * q + 2, t + 4 * q + 3))
            for x, y in ((0, 2), (1, 3), (4, 6), (5, 7)):
                L.append("v_permlane32_swap_b32 v%d, v%d" % (o + x, o + y))
            L.append("buffer_store_dwordx4 v[%d:%d], v2, s[20:23], %s offen offset:%d sc0 sc1" % (o, o + 3, so, V * 2048))
            L.append("buffer_store_dwordx4 v[%d:%d], v2, s[20:23], %s offen offset:%d sc0 sc1" % (o + 4, o + 7, so, V * 2048 + 16))
        return L
    a("""
    v_cvt_f32_u32 v14, v3
    v_mul_f32 v14, %s, v14
    v_lshlrev_b32 v15, 2, v4
    v_cvt_f32_u32 v15, v15
    v_add_f32 v5, %s, v14
    v_mul_f32 v6, v15, v5
    v_mul_f32 v15, v15, v14
    """ % (fl(1.0 / 2048), fl(32.0 / 2048)))
    a("s_waitcnt vmcnt(24)")
    stamp(a, 2)
    merge(stepA(0), [])
    a("""
    v_lshlrev_b32 v2, 6, v3
    v_lshl_add_u32 v2, v4, 5, v2
    s_lshl_b32 s77, s2, 12
    s_add_u32 s77, s77, 0x%x
    """ % ZT_OFF)
    merge(stepA(1), twiddle(0, 0, -1) + pack(FA, RE, 0) + pack(FB, IM, 0) + pack(FC, IM, 0, neg=True), lead=2)
    if "fftprof" in EXP: stamp(a, 3)
    a("s_add_u32 s79, s77, %d" % (225 * 4096))
    a("s_waitcnt vmcnt(8)")
    first.clear()
    merge(stepB(0, (0, 1)), twiddle(0, 1, -1) + pack(FA, RE, 1) + pack(FB, IM, 1) + pack(FC, IM, 1, neg=True))
    merge(stepB(0, (2, 3)), [])
    a("s_waitcnt vmcnt(0)")
    merge(stepB(1, (0, 1, 2, 3)), wmul(0), lead=2)
    if "fftprof" in EXP: stamp(a, 4)
    for x in pack(FA, RE, 0) + pack(FB, IM, 0) + pack(FC, RE, 0, neg=True):
        a(x)
    first.clear()
    merge(stepC(0, (0, 1)), wmul(1) + pack(FA, RE, 1) + pack(FB, IM, 1) + pack(FC, RE, 1, neg=True))
    merge(stepC(0, (2, 3)), [])
    merge(stepC(1, (0, 1, 2, 3)), twiddle(1, 0, +1), lead=2)
    if "fftprof" in EXP: stamp(a, 5)
    for x in pack(FA, RE, 0) + pack(FB, IM, 0):
        a(x)
    first.clear()
    merge(stepD(0), twiddle(1, 1, +1) + pack(FA, RE, 1) + pack(FB, IM, 1))
    merge(stepD(1), zout(0), lead=2)
    for x in zout(1):
        a(x)
    if "fftprof" in EXP:
        stamp(a, 6)
        stamp_flush(a, 1, 7)
        a("s_endpgm")
    a("K2_FFT_SKIP:")
    a("v_mov_b32 v80, v8")
    a("v_mov_b32 v81, v9")
    a("""
    s_lshl_b32 s77, s2, 6
    s_add_u32 s77, s77, 0x%x
    v_mov_b32 v8, s77
    v_mov_b32 v9, 1
    s_waitcnt vmcnt(0)
    s_mov_b64 exec, 1
    buffer_store_dword v9, v8, s[20:23], 0 offen sc0 sc1
    s_mov_b64 exec, -1
    s_setprio 0
    s_cmp_ge_u32 s2, 224
    s_cbranch_scc1 K2_END
    """ % CNT_OFF)
    k2_gate_fin(a)
    k2_tail_prep(a)
    for r in range(64):
        a("v_mov_b32 v%d, 0" % (144 + r))
    a("s_branch K2_TAIL")

def main(out):
    a = Asm()
    hdr = open("gated_mix__spectral_gfnet__glu_gated_geglu__prompt.s.ref").read().split("\n")
    for l in hdr:
        if l.startswith(";") and "@launch" not in l and "Override" not in l and "grid=ceil" not in l:
            a.raw(l)
    a.raw("; @launch kernel=%s grid=(256,1,1) block=(512,1,1) lds=147456" % K1)
    a.raw("; @launch kernel=%s grid=(225,1,1) block=(512,1,1) lds=147456" % K2)
    a.raw('.amdgcn_target "amdgcn-amd-amdhsa--gfx950"\n.text')
    gen_k1(a)
    gen_k2(a)
    a.raw('.section .rodata,"a"')
    a.raw(kernel_desc(K1, 224, 102))
    a.raw(kernel_desc(K2, 256, 102))
    open(out, "w").write(a.finalize())
    print("nops inserted", a.nops_inserted)

if __name__ == "__main__":
    if len(sys.argv) > 2 and sys.argv[2] == "stamp":
        STAMP = True
    main(sys.argv[1] if len(sys.argv) > 1 else "k.s")
```

```python
import sys, struct, math
sys.path.insert(0, "tools")
from asmgen import *

def f2u(x):
    return struct.unpack("<I", struct.pack("<f", x))[0]
def fl(x):
    return "0x%08x" % f2u(x)

H_OFF    = 0x0000000
PF_OFF   = 0x0700000
WT_OFF   = 0x0900000
GATE_OFF = 0x0B00000
GF_OFF   = 0x0B10000
TB_OFF   = 0x0B80000
CNT_OFF  = 0x0B85800
ZT_OFF   = 0x0C00000
BQ_OFF   = 0x0E00000
WS_SIZE  = 0x1100000

K1 = "k1_gateup_dft_kernel"
K2 = "k2_down_fft_kernel"
K3 = "k3_idft_mix_kernel"

LOG2E = 1.4426950408889634

STAMP = False
import os
EXP = os.environ.get("EXP", "")
PFG = int(os.environ.get("PFG", "20"))
HST = "" if "hplain" in EXP else " sc0 sc1"
STAMP_OFF = 0x1000000
def stamp(a, i):
    if not STAMP: return
    a("s_memrealtime s[98:99]")
    a("s_waitcnt lgkmcnt(0)")
    a("s_mov_b32 s%d, s98" % (90 + i))
    if i in (4, 5) and "clk" in EXP:
        a("s_memtime s[98:99]")
        a("s_waitcnt lgkmcnt(0)")
        a("s_mov_b32 s%d, s98" % (96 + i))
    if i in (2, 3) and "ck2" in EXP:
        a("s_memtime s[98:99]")
        a("s_waitcnt lgkmcnt(0)")
        a("s_mov_b32 s%d, s98" % (98 + i))
def stamp_flush(a, k, n):
    if not STAMP: return
    a("s_waitcnt vmcnt(0)")
    stamp(a, n)
    a("v_mov_b32 v2, 0")
    for i in range(n + 1):
        a("v_writelane_b32 v2, s%d, %d" % (90 + i, i))
    if ("clk" in EXP and k == 0) or ("ck2" in EXP and k == 1):
        a("v_writelane_b32 v2, s100, 8")
        a("v_writelane_b32 v2, s101, 9")
    a("s_lshl_b32 s98, s2, 3")
    a("s_add_u32 s98, s98, s36")
    a("s_lshl_b32 s98, s98, 6")
    a("s_add_u32 s98, s98, 0x%x" % (STAMP_OFF + k * 0x20000))
    a("v_lshlrev_b32 v3, 2, v1")
    a("s_mov_b64 exec, 0xffff")
    a("buffer_store_dword v2, v3, s[20:23], s98 offen")

class Vm:
    def __init__(self, a):
        self.a = a; self.ops = []
    def add(self, tag, n=1):
        self.ops += [tag] * n
    def cnt(self, tag):
        last = max(i for i, t in enumerate(self.ops) if t == tag)
        return len(self.ops) - 1 - last
    def wait(self, tag, extra=""):
        n = self.cnt(tag)
        assert n <= 63
        self.a("s_waitcnt vmcnt(%d)%s" % (n, extra))

DBGT = "dbgt" in EXP
def dbg_setup(a, back):
    if not DBGT: return
    a("s_load_dwordx2 s[92:93], s[0:1], 72")
    a("s_waitcnt lgkmcnt(0)")
    if not back:
        a("s_add_u32 s92, s92, 512")
        a("s_addc_u32 s93, s93, 0")
    a("s_mov_b32 s94, 256")
    a("s_mov_b32 s95, 0x00020000")
def dbg_time(a, slot, neg=False):
    if not DBGT: return
    a("s_waitcnt vmcnt(0)")
    a("s_memrealtime s[98:99]")
    a("s_waitcnt lgkmcnt(0)")
    if neg:
        a("s_not_b32 s98, s98")
    a("v_mov_b32 v2, s98")
    a("s_lshl_b32 s99, s36, 16")
    if neg:
        a("s_lshr_b32 s97, s2, 2")
        a("s_lshl_b32 s97, s97, 16")
        a("s_add_u32 s99, s99, s97")
    a("s_add_u32 s99, s99, %d" % (4 * slot))
    a("v_mov_b32 v3, s99")
    a("s_mov_b64 exec, 1")
    a("buffer_atomic_umax v2, v3, s[92:95], 0 offen")
    a("s_mov_b64 exec, -1")

def srd(a, base, ptr, nbytes):
    a("s_mov_b32 s%d, s%d" % (base, ptr))
    a("s_mov_b32 s%d, s%d" % (base + 1, ptr + 1))
    a("s_mov_b32 s%d, %d" % (base + 2, nbytes))
    a("s_mov_b32 s%d, 0x00020000" % (base + 3))

sX, sWg, sWu, sWS, sWr, sWi, sGw = 8, 12, 16, 20, 24, 28, 32
sWave = 36

def k1_side_loads(a):
    a("""
    s_and_b32 s40, s2, 31
    s_lshr_b32 s41, s2, 5
    s_lshl_b32 s41, s41, 3
    v_and_b32 v116, 255, v0
    v_lshrrev_b32 v117, 8, v0
    v_lshlrev_b32 v117, 2, v117
    v_add_u32 v117, s41, v117
    v_lshlrev_b32 v118, 5, v117
    v_add_u32 v118, s40, v118
    v_mul_u32_u24 v118, 450, v118
    v_lshl_add_u32 v118, v116, 1, v118
    s_mov_b32 s42, 14400
    s_mov_b32 s43, 28800
    s_mov_b32 s44, 43200
    buffer_load_ushort v100, v118, s[24:27], 0 offen
    buffer_load_ushort v101, v118, s[24:27], s42 offen
    buffer_load_ushort v102, v118, s[24:27], s43 offen
    buffer_load_ushort v103, v118, s[24:27], s44 offen
    buffer_load_ushort v104, v118, s[28:31], 0 offen
    buffer_load_ushort v105, v118, s[28:31], s42 offen
    buffer_load_ushort v106, v118, s[28:31], s43 offen
    buffer_load_ushort v107, v118, s[28:31], s44 offen
    """)
    a("""
    v_lshlrev_b32 v118, 5, v116
    v_add_u32 v118, s40, v118
    v_lshl_add_u32 v118, v118, 6, v117
    v_lshlrev_b32 v118, 2, v118
    v_add_u32 v118, 0x%x, v118
    """ % WT_OFF)
    a("""
    s_lshl_b32 s45, s2, 3
    s_add_u32 s45, s45, s36
    s_mul_i32 s46, s45, 896
    v_lshlrev_b32 v119, 4, v1
    v_add_u32 v120, s46, v119
    v_mov_b32 v121, 0x7ffffff0
    v_cmp_gt_u32 vcc, 56, v1
    v_cndmask_b32 v120, v121, v120, vcc
    buffer_load_dwordx4 v[108:111], v120, s[8:11], 0 offen
    buffer_load_dwordx4 v[112:115], v119, s[32:35], 0 offen
    """)

_uid = [0]
def k1_gf_compute(a):
    _uid[0] += 1
    L = "TJ%d" % _uid[0]
    a("""
    s_mov_b32 s53, 0x7ffffff0
    s_cmp_ge_u32 s45, 38
    s_cbranch_scc1 %s_E
    s_lshl_b32 s53, s45, 10
    s_add_u32 s53, s53, 0x%x
    s_cmp_ge_u32 s45, 22
    s_cbranch_scc1 %s_F
    v_and_b32 v129, 31, v1
    v_lshrrev_b32 v130, 5, v1
    s_mov_b32 s48, s45
    s_cmp_ge_u32 s48, 6
    s_cbranch_scc1 %s_X
    s_mov_b32 s52, %s
    s_mov_b32 s47, 0
    s_and_b32 s49, s48, 1
    s_lshl_b32 s49, s49, 4
    s_lshr_b32 s50, s48, 1
    s_cmp_eq_u32 s50, 1
    s_cselect_b32 s51, 0x3e800000, 0
    s_cmp_eq_u32 s50, 2
    s_cselect_b32 s50, 0xbe800000, s51
    s_branch %s_C
    %s_X:
    s_sub_u32 s48, s48, 6
    s_mov_b32 s52, %s
    s_lshr_b32 s47, s48, 2
    s_and_b32 s47, s47, 1
    s_lshl_b32 s47, s47, 5
    s_and_b32 s49, s48, 3
    s_lshl_b32 s49, s49, 4
    s_cmp_ge_u32 s48, 8
    s_cselect_b32 s50, 0x3e800000, 0
    %s_C:
    v_add_u32 v129, s47, v129
    v_cvt_f32_u32 v129, v129
    v_mul_f32 v129, s52, v129
    v_lshlrev_b32 v130, 2, v130
    v_add_u32 v130, s49, v130
    v_cvt_f32_u32 v130, v130
    v_mov_b32 v131, s50
    """ % (L, TB_OFF, L, L, fl(1.0 / 32), L, L, fl(1.0 / 64), L))
    for i in range(8):
        t = 136 + i
        a("v_add_f32 v144, %s, v130" % fl(float(8 * (i >> 2) + (i & 3))))
        a("v_fma_f32 v%d, v144, v129, v131" % t)
        a("v_cos_f32 v%d, v%d" % (t, t))
    for i in range(4):
        a("v_cvt_pk_bf16_f32 v%d, v%d, v%d" % (124 + i, 136 + 2 * i, 137 + 2 * i))
    a("s_branch %s_E" % L)
    a("%s_F:" % L)
    a("""
    s_sub_u32 s48, s45, 22
    s_lshl_b32 s48, s48, 4
    v_lshrrev_b32 v144, 2, v1
    v_add_u32 v144, s48, v144
    v_cmp_lt_u32 vcc, 224, v144
    v_cndmask_b32 v124, 0, 1, vcc
    """)
    a("%s_E:" % L)
    a("""
    v_lshlrev_b32 v128, 4, v1
    v_add_u32 v128, s53, v128
    """)

def k1_side_compute_store(a):
    for q in range(4):
        a("v_lshl_or_b32 v%d, v%d, 16, v%d" % (100 + q, 104 + q, 100 + q))
    a("v_mov_b32 v136, 0")
    for q in range(4):
        a("v_lshlrev_b32 v137, 16, v%d" % (108 + q))
        a("v_lshlrev_b32 v138, 16, v%d" % (112 + q))
        a("v_fmac_f32 v136, v137, v138")
        a("v_and_b32 v137, 0xffff0000, v%d" % (108 + q))
        a("v_and_b32 v138, 0xffff0000, v%d" % (112 + q))
        a("v_fmac_f32 v136, v137, v138")
    for sh in (1, 2, 4, 8):
        a("v_add_f32_dpp v136, v136, v136 row_shr:%d row_mask:0xf bank_mask:0xf bound_ctrl:0" % sh)
    a("""
    v_readlane_b32 s54, v136, 15
    v_readlane_b32 s55, v136, 31
    v_readlane_b32 s56, v136, 47
    v_readlane_b32 s57, v136, 63
    v_mov_b32 v136, s54
    v_add_f32 v136, s55, v136
    v_add_f32 v136, s56, v136
    v_add_f32 v136, s57, v136
    v_mul_f32 v136, %s, v136
    v_exp_f32 v136, v136
    v_add_f32 v136, 1.0, v136
    v_rcp_f32 v136, v136
    s_and_b32 s54, s45, 63
    s_lshl_b32 s54, s54, 5
    s_lshr_b32 s55, s45, 6
    s_add_u32 s54, s54, s55
    s_lshl_b32 s54, s54, 2
    s_add_u32 s54, s54, 0x%x
    v_mov_b32 v137, s54
    buffer_store_dwordx4 v[124:127], v128, s[20:23], 0 offen sc0 sc1
    v_cmp_gt_u32 vcc, 225, v116
    s_and_saveexec_b64 s[58:59], vcc
    buffer_store_dwordx4 v[100:103], v118, s[20:23], 0 offen sc0 sc1
    s_mov_b64 exec, 1
    buffer_store_dword v136, v137, s[20:23], 0 offen
    s_mov_b64 exec, s[58:59]
    """ % (fl(-LOG2E), GATE_OFF))

def k1_prefetch_wd(a):
    if "pair" in EXP:
        a("""
        s_lshr_b32 s86, s2, 3
        s_lshl_b32 s86, s86, 3
        s_add_u32 s86, s86, s36
        s_min_u32 s86, s86, 223
        s_mul_i32 s86, s86, 7168
        s_and_b32 s87, s2, 1
        s_mul_i32 s87, s87, 384
        s_add_u32 s86, s86, s87
        v_and_b32 v146, 31, v1
        v_lshrrev_b32 v147, 2, v146
        v_mul_u32_u24 v147, 896, v147
        v_and_b32 v146, 3, v146
        v_lshl_add_u32 v146, v146, 7, v147
        buffer_load_dword v147, v146, s[64:67], s86 offen
        """)
        return
    a("""
    s_lshr_b32 s86, s2, 3
    s_lshl_b32 s86, s86, 3
    s_add_u32 s86, s86, s36
    s_mul_i32 s86, s86, 6272
    v_lshlrev_b32 v146, 7, v1
    buffer_load_dword v147, v146, s[64:67], s86 offen
    """)

def k1_prefetch_in(a, L):
    a("""
    s_lshr_b32 s40, s2, 3
    s_lshl_b32 s40, s40, 3
    s_add_u32 s40, s40, s36
    s_min_u32 s40, s40, 209
    s_mul_i32 s41, s40, 9363
    s_lshr_b32 s41, s41, 16
    s_mul_i32 s42, s41, 7
    s_sub_u32 s42, s40, s42
    s_lshl_b32 s42, s42, 7
    s_and_b32 s43, s2, 7
    s_cmp_ge_u32 s41, 16
    s_cbranch_scc1 K1_PFW%(L)s
    s_and_b32 s44, s43, 1
    s_lshl_b32 s44, s44, 5
    s_lshl_b32 s45, s41, 1
    s_add_u32 s44, s44, s45
    s_mul_i32 s44, s44, 896
    s_add_u32 s44, s44, s42
    v_and_b32 v146, 31, v1
    v_mul_u32_u24 v146, 57344, v146
    v_lshrrev_b32 v147, 5, v1
    v_mul_u32_u24 v147, 896, v147
    v_add_u32 v146, v146, v147
    buffer_load_dword v148, v146, s[8:11], s44 offen
    s_branch K1_PFE%(L)s
    K1_PFW%(L)s:
    s_lshr_b32 s44, s43, 1
    s_mul_i32 s44, s44, 896
    s_add_u32 s44, s44, s42
    v_mul_u32_u24 v146, 3584, v1
    s_cmp_ge_u32 s41, 23
    s_cbranch_scc1 K1_PFU%(L)s
    s_sub_u32 s45, s41, 16
    s_mul_i32 s45, s45, 229376
    s_add_u32 s44, s44, s45
    buffer_load_dword v148, v146, s[12:15], s44 offen
    s_branch K1_PFE%(L)s
    K1_PFU%(L)s:
    s_sub_u32 s45, s41, 23
    s_mul_i32 s45, s45, 229376
    s_add_u32 s44, s44, s45
    buffer_load_dword v148, v146, s[16:19], s44 offen
    K1_PFE%(L)s:
    """ % {"L": L})

def gen_k1(a):
    a.raw(kernel_header(K1))
    a("""
    s_cmp_ge_u32 s2, 256
    s_cbranch_scc1 K1_END
    s_load_dwordx2 s[4:5], s[0:1], 0
    s_load_dwordx4 s[60:63], s[0:1], 8
    s_load_dwordx4 s[64:67], s[0:1], 32
    s_load_dwordx2 s[68:69], s[0:1], 56
    s_load_dwordx2 s[70:71], s[0:1], 80
    s_load_dwordx2 s[6:7], s[0:1], 48
    v_and_b32 v1, 63, v0
    v_lshrrev_b32 v2, 6, v0
    v_readfirstlane_b32 s36, v2
    s_waitcnt lgkmcnt(0)
    """)
    srd(a, sX, 4, 1835008)
    srd(a, sWr, 60, 921600)
    srd(a, sWi, 62, 921600)
    srd(a, sWg, 64, 1605632)
    srd(a, sWu, 66, 1605632)
    srd(a, sGw, 68, 896)
    srd(a, sWS, 70, WS_SIZE)
    srd(a, 64, 6, 1605632)
    stamp(a, 0)
    dbg_setup(a, False)
    dbg_time(a, 0, neg=True)
    if "pf0" in EXP:
        k1_prefetch_in(a, "A")
    a("""
    s_cmp_ge_u32 s2, 224
    s_cbranch_scc1 K1_DFT
    """)
    gen_k1_gateup(a)
    a("K1_DFT:")
    gen_k1_dft(a)
    a("K1_END:")
    a("s_endpgm")

def gen_k1_gateup(a):
    a("""
    s_and_b32 s72, s2, 7
    s_lshr_b32 s73, s2, 3
    s_and_b32 s74, s72, 1
    s_lshl_b32 s74, s74, 2
    s_and_b32 s75, s73, 3
    s_add_u32 s74, s74, s75
    s_lshr_b32 s75, s72, 1
    s_mul_i32 s75, s75, 7
    s_lshr_b32 s76, s73, 2
    s_add_u32 s75, s75, s76
    """)
    if "maprow" in EXP:
        a("s_and_b32 s74, s2, 7")
        a("s_lshr_b32 s75, s2, 3")
    a("""
    s_lshl_b32 s76, s74, 3
    s_add_u32 s76, s76, s36
    s_mul_i32 s76, s76, 896
    v_lshrrev_b32 v8, 3, v1
    v_mul_u32_u24 v9, 57344, v8
    v_add_u32 v9, s76, v9
    v_lshrrev_b32 v10, 4, v1
    v_and_b32 v11, 7, v1
    v_xor_b32 v12, v11, v10
    v_xor_b32 v13, 4, v12
    v_lshl_add_u32 v4, v12, 4, v9
    v_lshl_add_u32 v5, v13, 4, v9
    v_add_u32 v5, 458752, v5
    v_add_u32 v6, 917504, v4
    v_add_u32 v7, 917504, v5
    """)
    a("""
    s_lshl_b32 s77, s36, 3
    v_add_u32 v9, s77, v8
    v_mul_u32_u24 v9, 3584, v9
    v_and_b32 v10, 1, v10
    v_lshlrev_b32 v10, 2, v10
    v_xor_b32 v10, v11, v10
    v_lshl_add_u32 v3, v10, 4, v9
    s_lshl_b32 s77, s75, 7
    v_add_u32 v3, s77, v3
    s_lshl_b32 s78, s36, 12
    s_lshl_b32 s79, s36, 10
    """)
    def issue_part(ks, part):
        sb = (ks % 3) * 49152
        if part < 2:
            a("s_mov_b32 s80, %d" % (ks * 128))
            for q in (2 * part, 2 * part + 1):
                a("s_add_u32 m0, s78, %d" % (sb + q * 1024))
                a("buffer_load_dwordx4 v%d, s[8:11], s80 offen lds" % (4 + q))
        else:
            a("s_mov_b32 s81, %d" % (ks * 229376))
            a("s_add_u32 m0, s79, %d" % (sb + 32768))
            a("buffer_load_dwordx4 v3, s[12:15], s81 offen lds")
            a("s_add_u32 m0, s79, %d" % (sb + 40960))
            a("buffer_load_dwordx4 v3, s[16:19], s81 offen lds")
        vmt.add("S%d" % ks, 2)
    vmt = Vm(a)
    for part in (2, 0, 1):
        issue_part(0, part)
    a("""
    s_lshr_b32 s82, s36, 1
    s_and_b32 s83, s36, 1
    s_lshl_b32 s84, s82, 13
    v_and_b32 v8, 31, v1
    v_lshlrev_b32 v8, 7, v8
    v_add_u32 v8, s84, v8
    v_lshrrev_b32 v9, 5, v1
    v_lshrrev_b32 v10, 1, v1
    v_and_b32 v10, 7, v10
    """)
    for j in range(4):
        a("v_add_u32 v11, %d, v9" % (2 * j))
        a("v_xor_b32 v11, v11, v10")
        a("v_lshl_add_u32 v%d, v11, 4, v8" % (14 + j))
        a("v_add_u32 v%d, 49152, v%d" % (18 + j, 14 + j))
        a("v_add_u32 v%d, 98304, v%d" % (22 + j, 14 + j))
    a("""
    v_and_b32 v8, 15, v1
    v_lshrrev_b32 v9, 2, v8
    v_lshrrev_b32 v10, 5, v1
    v_lshl_add_u32 v9, v10, 3, v9
    v_lshlrev_b32 v9, 7, v9
    v_lshrrev_b32 v10, 4, v1
    v_and_b32 v10, 1, v10
    v_lshlrev_b32 v10, 1, v10
    v_lshrrev_b32 v11, 1, v8
    v_and_b32 v11, 1, v11
    v_add_u32 v10, v10, v11
    s_lshl_b32 s84, s83, 2
    v_add_u32 v10, s84, v10
    v_lshrrev_b32 v11, 3, v8
    v_lshlrev_b32 v11, 2, v11
    v_xor_b32 v10, v10, v11
    v_lshl_add_u32 v9, v10, 4, v9
    v_and_b32 v11, 1, v8
    v_lshl_add_u32 v26, v11, 3, v9
    v_add_u32 v27, 49152, v26
    v_add_u32 v28, 98304, v26
    """)
    ACC = 160
    for part in (2, 0, 1):
        issue_part(1, part)
    k1_side_loads(a); vmt.add("SL", 10)
    k1_gf_compute(a)
    stamp(a, 1)
    FR = [32, 48]
    def reads(g):
        st, j = (g >> 2) % 3, g & 3
        f = FR[g & 1]
        for u in range(2):
            for rd in range(2):
                a("ds_read_b64_tr_b16 v[%d:%d], v%d offset:%d" % (f + 4 * u + 2 * rd, f + 4 * u + 2 * rd + 1, 26 + st,
                                                               32768 + 8192 * u + (16 * j + 4 * rd) * 128))
        for tt in range(2):
            a("ds_read_b128 v[%d:%d], v%d offset:%d" % (f + 8 + 4 * tt, f + 11 + 4 * tt, 14 + 4 * st + j, tt * 4096))
    def mfmas(g):
        f = FR[g & 1]
        if "nomfma" in EXP: return
        for u in range(2):
            for tt in range(2):
                c = ACC + 32 * u + 16 * tt
                a("v_mfma_f32_32x32x16_bf16 v[%d:%d], v[%d:%d], v[%d:%d], %s" %
                  (c, c + 15, f + 4 * u, f + 4 * u + 3, f + 8 + 4 * tt, f + 11 + 4 * tt, "0" if g == 0 else "v[%d:%d]" % (c, c + 15)))
    vmt.wait("S0")
    stamp(a, 3)
    a("s_barrier")
    stamp(a, 4)
    reads(0)
    for g in range(28):
        i, j = g >> 2, g & 3
        if j == 3 and i < 6:
            vmt.wait("S%d" % (i + 1), " lgkmcnt(0)")
            a("s_barrier")
            reads(g + 1)
            mfmas(g)
        elif g == 27:
            a("s_waitcnt lgkmcnt(0)")
            mfmas(g)
        else:
            reads(g + 1)
            a("s_waitcnt lgkmcnt(6)")
            mfmas(g)
            if g == 8:
                k1_side_compute_store(a); vmt.add("ST", 3)
            if i + 2 <= 6:
                if "early" in EXP:
                    if j == 0:
                        for part in (2, 0, 1):
                            issue_part(i + 2, part)
                else:
                    issue_part(i + 2, (2, 0, 1)[j])
            if g == PFG:
                k1_prefetch_wd(a); vmt.add("PF")
    stamp(a, 5)
    c0 = -2.0 * 0.7978845608028654 * LOG2E
    c1 = c0 * 0.044715
    a("v_mov_b32 v64, %s" % fl(c0))
    a("""
    s_lshl_b32 s84, s74, 3
    s_lshl_b32 s85, s82, 1
    s_add_u32 s84, s84, s85
    s_mul_i32 s84, s84, 112
    s_lshl_b32 s85, s75, 1
    s_add_u32 s85, s85, s83
    s_lshl_b32 s85, s85, 1
    s_add_u32 s84, s84, s85
    s_lshl_b32 s84, s84, 10
    s_add_u32 s85, s84, 114688
    v_lshlrev_b32 v65, 4, v1
    """)
    for tt in range(2):
        G = ACC + 16 * tt; U = ACC + 32 + 16 * tt
        for r0 in range(0, 16, 4):
            T = [66 + k for k in range(4)]
            Y = [70 + k for k in range(4)]
            for k in range(4): a("v_mul_f32 v%d, v%d, v%d" % (T[k], G + r0 + k, G + r0 + k))
            for k in range(4): a("v_fmamk_f32 v%d, v%d, %s, v64" % (T[k], T[k], fl(c1)))
            for k in range(4): a("v_mul_f32 v%d, v%d, v%d" % (T[k], T[k], G + r0 + k))
            for k in range(4): a("v_exp_f32 v%d, v%d" % (T[k], T[k]))
            for k in range(4): a("v_mul_f32 v%d, v%d, v%d" % (Y[k], G + r0 + k, U + r0 + k))
            for k in range(4): a("v_add_f32 v%d, 1.0, v%d" % (T[k], T[k]))
            for k in range(4): a("v_rcp_f32 v%d, v%d" % (T[k], T[k]))
            for k in range(4): a("v_mul_f32 v%d, v%d, v%d" % (Y[k], Y[k], T[k]))
            o = 76 + 8 * tt + r0 // 2
            a("v_cvt_pk_bf16_f32 v%d, v%d, v%d" % (o, Y[0], Y[1]))
            a("v_cvt_pk_bf16_f32 v%d, v%d, v%d" % (o + 1, Y[2], Y[3]))
        o = 76 + 8 * tt
        so = "s84" if tt == 0 else "s85"
        a("buffer_store_dwordx4 v[%d:%d], v65, s[20:23], %s offen%s" % (o, o + 3, so, HST))
        a("buffer_store_dwordx4 v[%d:%d], v65, s[20:23], %s offen offset:1024%s" % (o + 4, o + 7, so, HST))
    stamp(a, 6)
    stamp_flush(a, 0, 7)
    dbg_time(a, 1)
    a("s_endpgm")

def gen_k1_dft(a):
    a("""
    s_sub_u32 s72, s2, 224
    s_lshr_b32 s73, s72, 3
    s_and_b32 s75, s73, 1
    s_lshr_b32 s73, s73, 1
    s_and_b32 s74, s72, 1
    s_lshl_b32 s74, s74, 3
    s_add_u32 s74, s74, s73
    s_lshr_b32 s73, s72, 1
    s_and_b32 s73, s73, 3
    s_lshl_b32 s73, s73, 1
    s_add_u32 s74, s74, s73
    """)
    a("""
    s_lshl_b32 s76, s74, 2
    s_lshr_b32 s77, s36, 1
    s_add_u32 s76, s76, s77
    s_mul_i32 s76, s76, 896
    s_and_b32 s77, s36, 1
    s_mul_i32 s77, s77, 917504
    s_add_u32 s76, s76, s77
    v_lshrrev_b32 v8, 3, v1
    v_mul_u32_u24 v9, 57344, v8
    v_add_u32 v9, s76, v9
    v_lshrrev_b32 v10, 4, v1
    v_and_b32 v11, 7, v1
    v_xor_b32 v12, v11, v10
    v_xor_b32 v13, 4, v12
    v_lshl_add_u32 v4, v12, 4, v9
    v_lshl_add_u32 v5, v13, 4, v9
    v_add_u32 v5, 458752, v5
    s_lshl_b32 s78, s36, 11
    """)
    def issue_stage(ks):
        a("s_mov_b32 s80, %d" % (ks * 128))
        for q in range(2):
            a("s_add_u32 m0, s78, %d" % (ks * 16384 + q * 1024))
            a("buffer_load_dwordx4 v%d, s[8:11], s80 offen lds" % (4 + q))
    issue_stage(0)
    if "pf1" in EXP:
        k1_prefetch_in(a, "C")
    k1_side_loads(a)
    a("""
    v_and_b32 v8, 31, v1
    v_lshlrev_b32 v8, 7, v8
    v_lshrrev_b32 v9, 5, v1
    v_lshrrev_b32 v10, 1, v1
    v_and_b32 v10, 7, v10
    """)
    for j in range(4):
        a("v_add_u32 v11, %d, v9" % (2 * j))
        a("v_xor_b32 v11, v11, v10")
        a("v_lshl_add_u32 v%d, v11, 4, v8" % (14 + j))
        a("v_add_u32 v%d, 65536, v%d" % (18 + j, 14 + j))
    a("""
    s_lshl_b32 s82, s75, 7
    s_lshl_b32 s83, s36, 4
    s_add_u32 s82, s82, s83
    v_and_b32 v8, 15, v1
    v_add_u32 v22, s82, v8
    v_cvt_f32_u32 v23, v22
    v_mul_f32 v23, %s, v23
    v_lshrrev_b32 v9, 5, v1
    v_lshlrev_b32 v9, 3, v9
    v_cvt_f32_u32 v9, v9
    v_lshrrev_b32 v10, 4, v1
    v_and_b32 v10, 1, v10
    v_cvt_f32_u32 v11, v10
    v_mul_f32 v11, 0.5, v11
    v_mul_f32 v11, 0.5, v11
    v_fma_f32 v24, v9, v23, v11
    """ % fl(1.0 / 448.0))
    a("""
    v_and_b32 v9, 31, v1
    v_and_b32 v11, 15, v9
    v_lshrrev_b32 v9, 4, v9
    v_lshl_add_u32 v9, v11, 1, v9
    v_mul_u32_u24 v25, 272, v9
    v_lshrrev_b32 v9, 5, v1
    v_lshl_add_u32 v25, v9, 4, v25
    s_mul_i32 s85, s36, 8704
    v_add_u32 v25, s85, v25
    v_lshrrev_b32 v9, 4, v1
    v_mul_u32_u24 v26, 272, v9
    v_lshl_add_u32 v26, v8, 4, v26
    v_add_u32 v26, s85, v26
    v_lshlrev_b32 v27, 12, v9
    v_lshl_add_u32 v27, v8, 4, v27
    s_lshl_b32 s84, s82, 13
    s_lshl_b32 s85, s74, 8
    s_add_u32 s84, s84, s85
    s_add_u32 s84, s84, 0x%x
    v_cos_f32 v28, v23
    v_add_f32 v28, v28, v28
    """ % PF_OFF)
    ACC = 160
    for r in range(64):
        a("v_mov_b32 v%d, 0" % (ACC + r))
    k1_gf_compute(a)
    issue_stage(1)
    issue_stage(2)
    stamp(a, 1)
    a("s_waitcnt vmcnt(4)")
    stamp(a, 2)
    k1_side_compute_store(a)
    FR = [32, 48]
    FF = [64, 68]
    def reads(g):
        st, j = g >> 2, g & 3
        f = FR[g & 1]
        for tt in range(4):
            off = st * 16384 + tt * 4096
            base = 14 + j
            if off >= 65536:
                off -= 65536; base = 18 + j
            a("ds_read_b128 v[%d:%d], v%d offset:%d" % (f + 4 * tt, f + 4 * tt + 3, base, off))
    def fgen(g):
        f = FF[g & 1]
        for i in range(2):
            a("v_fmamk_f32 v%d, v23, %s, v24" % (72 + i, fl(float(16 * g + i))))
        for i in range(2):
            a("v_cos_f32 v%d, v%d" % (72 + i, 72 + i))
        for i in range(2, 8):
            a("v_fma_f32 v%d, v28, v%d, -v%d" % (72 + i, 71 + i, 70 + i))
        for i in range(4):
            a("v_cvt_pk_bf16_f32 v%d, v%d, v%d" % (f + i, 72 + 2 * i, 73 + 2 * i))
    def mfmas(g):
        f = FR[g & 1]; ff = FF[g & 1]
        for tt in range(4):
            c = ACC + 16 * tt
            a("v_mfma_f32_32x32x16_bf16 v[%d:%d], v[%d:%d], v[%d:%d], v[%d:%d]" %
              (c, c + 15, f + 4 * tt, f + 4 * tt + 3, ff, ff + 3, c, c + 15))
    vm = {0: 7, 1: 7, 2: 7, 3: 4, 4: 4, 5: 3, 6: 1}
    fgen(0)
    a("s_waitcnt vmcnt(%d)" % vm[0])
    stamp(a, 3)
    a("s_barrier")
    stamp(a, 4)
    reads(0)
    for g in range(28):
        i, j = g >> 2, g & 3
        if j == 3 and i < 6:
            a("s_waitcnt vmcnt(%d)" % vm[i + 1])
            a("s_barrier")
            reads(g + 1)
            a("s_waitcnt lgkmcnt(4)")
            mfmas(g)
            fgen(g + 1)
        elif g == 27:
            a("s_waitcnt lgkmcnt(0)")
            mfmas(g)
        else:
            reads(g + 1)
            a("s_waitcnt lgkmcnt(4)")
            mfmas(g)
            fgen(g + 1)
            if j == 0 and i + 3 <= 6:
                issue_stage(i + 3)
            if g == 17:
                k1_prefetch_wd(a)
    stamp(a, 5)
    for tt in range(4):
        c = ACC + 16 * tt
        o = 32 + 8 * tt
        for k in range(8):
            a("v_cvt_pk_bf16_f32 v%d, v%d, v%d" % (o + k, c + 2 * k, c + 2 * k + 1))
        a("ds_write_b128 v25, v[%d:%d] offset:%d" % (o, o + 3, tt * 64))
        a("ds_write_b128 v25, v[%d:%d] offset:%d" % (o + 4, o + 7, tt * 64 + 32))
    a("s_waitcnt lgkmcnt(0)")
    for m in range(8):
        a("ds_read_b128 v[%d:%d], v26 offset:%d" % (64 + 4 * m, 67 + 4 * m, m * 4 * 272))
    for m in range(8):
        a("s_waitcnt lgkmcnt(%d)" % (7 - m))
        a("s_add_u32 s85, s84, %d" % (m * 16384))
        a("buffer_store_dwordx4 v[%d:%d], v27, s[20:23], s85 offen sc0 sc1" % (64 + 4 * m, 67 + 4 * m))
    stamp(a, 6)
    stamp_flush(a, 0, 7)
    dbg_time(a, 1)
    a("s_endpgm")


def mfma(a, c, A, B):
    a("v_mfma_f32_32x32x16_bf16 v[%d:%d], v[%d:%d], v[%d:%d], v[%d:%d]" % (c, c + 15, A, A + 3, B, B + 3, c, c + 15))

def gen_k2(a):
    a.raw(kernel_header(K2))
    a("""
    s_cmp_ge_u32 s2, %d
    s_cbranch_scc1 K2_END
    s_load_dwordx2 s[4:5], s[0:1], 48
    s_load_dwordx2 s[60:61], s[0:1], 64
    s_load_dwordx2 s[6:7], s[0:1], 80
    v_and_b32 v1, 63, v0
    v_lshrrev_b32 v2, 6, v0
    v_readfirstlane_b32 s36, v2
    s_waitcnt lgkmcnt(0)
    """ % (253 if DED else 225))
    srd(a, 8, 4, 1605632)
    srd(a, 20, 6, WS_SIZE)
    srd(a, 12, 60, 1835008)
    stamp(a, 0)
    dbg_setup(a, True)
    dbg_time(a, 2, neg=True)
    if DED:
        a("""
        s_lshl_b32 s89, s2, 3
        s_add_u32 s89, s89, s36
        s_cmp_lt_u32 s2, 29
        s_cbranch_scc1 K2_FFT
        s_sub_u32 s2, s2, 29
        """)
        tile_map_64(a)
        a("s_lshl_b32 s78, s36, 14")
    else:
        tile_map_64(a)
        a("""
        s_mov_b32 s89, s2
        s_lshl_b32 s78, s36, 14
        s_cmp_eq_u32 s36, 7
        s_cbranch_scc1 K2_FFT
        s_cmp_ge_u32 s2, 224
        s_cbranch_scc1 K2_END
        """)
    gen_k2_down(a)
    a("K2_FFT:")
    gen_k2_fft(a)
    a("K2_END:")
    a("s_endpgm")

def tile_map_64(a):
    if "pair" in EXP:
        a("""
        s_and_b32 s72, s2, 7
        s_lshr_b32 s73, s2, 3
        s_lshr_b32 s74, s72, 1
        s_lshl_b32 s74, s74, 3
        s_and_b32 s72, s72, 1
        s_lshl_b32 s72, s72, 2
        s_cmp_ge_u32 s73, 24
        s_cbranch_scc1 K2_MAPB
        s_and_b32 s76, s73, 7
        s_add_u32 s74, s74, s76
        s_lshr_b32 s75, s73, 3
        s_add_u32 s75, s75, s72
        s_branch K2_MAPE
        K2_MAPB:
        s_sub_u32 s76, s73, 24
        s_and_b32 s76, s76, 3
        s_add_u32 s74, s74, s76
        s_add_u32 s74, s74, s72
        s_mov_b32 s75, 3
        K2_MAPE:
        """)
        return
    a("""
    s_and_b32 s72, s2, 7
    s_lshl_b32 s72, s72, 2
    s_lshr_b32 s73, s2, 3
    s_and_b32 s74, s73, 3
    s_add_u32 s74, s74, s72
    s_lshr_b32 s75, s2, 5
    """)

def tr_addr(a, dst, rowmul_h, chunk_sgpr):
    sh = {4: 2, 8: 3}[rowmul_h]
    a("""
    v_and_b32 v8, 15, v1
    v_lshrrev_b32 v9, 2, v8
    v_lshrrev_b32 v10, 5, v1
    v_lshl_add_u32 v9, v10, %d, v9
    v_lshlrev_b32 v9, 7, v9
    v_lshrrev_b32 v10, 4, v1
    v_and_b32 v10, 1, v10
    v_lshlrev_b32 v10, 1, v10
    v_lshrrev_b32 v11, 1, v8
    v_and_b32 v11, 1, v11
    v_add_u32 v10, v10, v11
    v_add_u32 v10, %s, v10
    v_lshrrev_b32 v11, 3, v8
    v_lshlrev_b32 v11, 2, v11
    v_xor_b32 v10, v10, v11
    v_lshl_add_u32 v9, v10, 4, v9
    v_and_b32 v11, 1, v8
    v_lshl_add_u32 v%d, v11, 3, v9
    """ % (sh, chunk_sgpr, dst))

def k2_tail_prep(a):
    a("""
    v_lshlrev_b32 v7, 4, v1
    v_and_b32 v12, 31, v1
    v_lshrrev_b32 v13, 5, v1
    s_lshl_b32 s80, s75, 6
    v_add_u32 v208, s80, v12
    v_cvt_f32_u32 v208, v208
    v_mul_f32 v208, %s, v208
    v_add_f32 v209, %s, v208
    s_and_b32 s80, s36, 3
    s_lshl_b32 s80, s80, 6
    v_lshlrev_b32 v210, 3, v13
    v_add_u32 v210, s80, v210
    v_cvt_f32_u32 v210, v210
    s_cmp_ge_u32 s36, 4
    s_cselect_b32 s81, 0x3e800000, 0
    s_cselect_b32 s82, 0, 0.5
    v_mov_b32 v211, s81
    v_mov_b32 v212, s82
    v_fma_f32 v213, v210, v208, v211
    v_fma_f32 v214, v210, v209, v211
    v_cos_f32 v215, v208
    v_cos_f32 v216, v209
    v_add_f32 v215, v215, v215
    v_add_f32 v216, v216, v216
    v_mov_b32 v217, %s
    v_mov_b32 v218, 0
    v_mov_b32 v219, 1.0
    """ % (fl(1.0 / 448.0), fl(32.0 / 448.0), fl(224.0)))
    F = 220; SCL = 228
    for m in range(4):
        idx = [0] if m == 0 else list(range(8)) if m >= 2 else []
        for i in idx:
            a("v_add_f32 v236, %s, v210" % fl(float(16 * m + i)))
            a("v_cmp_lt_f32 vcc, v217, v236")
            a("v_cndmask_b32 v%d, v219, v218, vcc" % (SCL + i))
            a("v_cmp_eq_f32 vcc, v217, v236")
            a("v_cndmask_b32 v%d, v%d, v212, vcc" % (SCL + i, SCL + i))
            a("v_cmp_eq_f32 vcc, 0, v236")
            a("v_cndmask_b32 v%d, v%d, v212, vcc" % (SCL + i, SCL + i))
        for dtl in range(2):
            d = 96 + 4 * (4 * dtl + m)
            for i in range(2):
                a("v_fmamk_f32 v%d, v%d, %s, v%d" % (F + i, 208 + dtl, fl(float(16 * m + i)), 213 + dtl))
            for i in range(2):
                a("v_cos_f32 v%d, v%d" % (F + i, F + i))
            for i in range(2, 8):
                a("v_fma_f32 v%d, v%d, v%d, -v%d" % (F + i, 215 + dtl, F + i - 1, F + i - 2))
            for i in idx:
                a("v_mul_f32 v%d, v%d, v%d" % (F + i, F + i, SCL + i))
            for i in range(4):
                a("v_cvt_pk_bf16_f32 v%d, v%d, v%d" % (d + i, F + 2 * i, F + 2 * i + 1))
    a("""
    s_and_b32 s83, s36, 3
    s_lshl_b32 s83, s83, 6
    v_lshrrev_b32 v8, 3, v1
    v_add_u32 v8, s83, v8
    v_lshrrev_b32 v10, 4, v1
    v_and_b32 v10, 1, v10
    v_lshlrev_b32 v10, 2, v10
    v_and_b32 v11, 7, v1
    v_xor_b32 v10, v11, v10
    v_lshlrev_b32 v10, 4, v10
    s_lshr_b32 s84, s36, 2
    s_mul_i32 s84, s84, %d
    s_lshl_b32 s85, s74, 7
    s_add_u32 s84, s84, s85
    s_add_u32 s84, s84, 0x%x
    v_mov_b32 v15, 224
    s_mov_b32 s85, 0x%x
    """ % (225 * 4096, ZT_OFF, CNT_OFF))
    for b in range(8):
        a("v_add_u32 v9, %d, v8" % (8 * b))
        a("v_min_u32 v9, v9, v15")
        a("v_lshl_add_u32 v%d, v9, 12, v10" % (82 + b))
    tr_addr(a, 90, 8, "0")
    a("v_add_u32 v90, s78, v90")
    a("v_xor_b32 v91, 64, v90")

def k2_gate_load(a, d=80):
    a("""
    v_and_b32 v14, 31, v1
    v_lshlrev_b32 v14, 2, v14
    s_lshl_b32 s86, s74, 8
    s_add_u32 s86, s86, 0x%x
    buffer_load_dword v%d, v14, s[20:23], s86 offen
    buffer_load_dword v%d, v14, s[20:23], s86 offen offset:128
    """ % (GATE_OFF, d, d + 1))

def k2_gate_fin(a):
    a("""
    v_sub_f32 v92, 1.0, v80
    v_sub_f32 v93, 1.0, v81
    v_mul_f32 v80, %s, v80
    v_mul_f32 v81, %s, v81
    """ % (fl(2.0 / (2048.0 * 448.0)), fl(2.0 / (2048.0 * 448.0))))

DED = "ded" in EXP
NSTEP = 14 if DED else 16
DEPTH = int(os.environ.get("DEPTH", "6"))
def gen_k2_down(a):
    a("""
    v_lshrrev_b32 v8, 3, v1
    v_mul_u32_u24 v9, 896, v8
    v_lshrrev_b32 v10, 4, v1
    v_and_b32 v10, 1, v10
    v_lshlrev_b32 v10, 2, v10
    v_and_b32 v11, 7, v1
    v_xor_b32 v10, v11, v10
    v_lshl_add_u32 v3, v10, 4, v9
    s_lshl_b32 s76, s75, 7
    s_mul_i32 s77, s36, %d
    s_add_u32 s76, s76, s77
    v_add_u32 v3, s76, v3
    s_mul_i32 s76, s74, 224
    s_mul_i32 s77, s36, %d
    s_add_u32 s76, s76, s77
    s_lshl_b32 s76, s76, 10
    v_lshlrev_b32 v4, 4, v1
    v_add_u32 v4, s76, v4
    """ % (NSTEP * 14336, NSTEP))
    HF = 16; AF = [128, 136]; ACC = 144
    def hreg(s):
        return HF + 8 * (s % 8)
    def issue(s):
        slot = s % 8
        a("s_mov_b32 s80, %d" % (s * 14336))
        a("s_mov_b32 s81, %d" % (s * 14336 + 7168))
        a("s_mov_b32 s82, %d" % (H_OFF + s * 1024))
        a("s_mov_b32 s83, %d" % (H_OFF + s * 1024 + 114688))
        a("s_add_u32 m0, s78, %d" % (slot * 2048))
        a("buffer_load_dwordx4 v3, s[8:11], s80 offen lds")
        a("s_add_u32 m0, s78, %d" % (slot * 2048 + 1024))
        a("buffer_load_dwordx4 v3, s[8:11], s81 offen lds")
        a("buffer_load_dwordx4 v[%d:%d], v4, s[20:23], s82 offen" % (hreg(s), hreg(s) + 3))
        a("buffer_load_dwordx4 v[%d:%d], v4, s[20:23], s83 offen" % (hreg(s) + 4, hreg(s) + 7))
    if "nobar" not in EXP and not DED:
        a("s_barrier")
    if "nodown" in EXP:
        a("s_branch K2_TAIL")
    k2_gate_load(a)
    for s in range(DEPTH):
        issue(s)
    tr_addr(a, 5, 4, "0")
    a("v_add_u32 v5, s78, v5")
    a("v_xor_b32 v6, 64, v5")
    issued = [DEPTH]
    def wait_step(k):
        a("s_waitcnt vmcnt(%d)" % (4 * (issued[0] - k - 1)))
    def reads(s):
        f = AF[s & 1]; slot = s % 8
        for dtl in range(2):
            for rd in range(2):
                a("ds_read_b64_tr_b16 v[%d:%d], v%d offset:%d" % (f + 4 * dtl + 2 * rd, f + 4 * dtl + 2 * rd + 1, 5 + dtl,
                                                               slot * 2048 + rd * 1024))
    stamp(a, 1)
    wait_step(0)
    stamp(a, 2)
    k2_gate_fin(a)
    reads(0)
    for s in range(NSTEP):
        if s + 1 < NSTEP:
            wait_step(s + 1); reads(s + 1)
            a("s_waitcnt lgkmcnt(4)")
        else:
            a("s_waitcnt lgkmcnt(0)")
        f = AF[s & 1]
        for dtl in range(2):
            for tt in range(2):
                c = ACC + 16 * (2 * dtl + tt); A = f + 4 * dtl; B = hreg(s) + 4 * tt
                a("v_mfma_f32_32x32x16_bf16 v[%d:%d], v[%d:%d], v[%d:%d], %s" %
                  (c, c + 15, A, A + 3, B, B + 3, "0" if s == 0 else "v[%d:%d]" % (c, c + 15)))
        if s + DEPTH < NSTEP:
            issue(s + DEPTH); issued[0] += 1
        if s + DEPTH == NSTEP - 1:
            k2_tail_prep(a)
    a("K2_TAIL:")
    stamp(a, 3)
    a("""
    s_cmp_lg_u32 s36, 7
    s_cbranch_scc1 K2_GO
    v_lshlrev_b32 v228, 8, v1
    K2_POLL:
    buffer_load_dword v224, v228, s[20:23], s85 offen sc1
    buffer_load_dword v225, v228, s[20:23], s85 offen offset:64 sc1
    buffer_load_dword v226, v228, s[20:23], s85 offen offset:128 sc1
    buffer_load_dword v227, v228, s[20:23], s85 offen offset:192 sc1
    s_waitcnt vmcnt(0)
    v_and_b32 v224, v224, v225
    v_and_b32 v226, v226, v227
    v_and_b32 v224, v224, v226
    v_cmp_eq_u32 vcc, 1, v224
    s_cmp_eq_u64 vcc, exec
    s_cbranch_scc1 K2_GO
    s_sleep 4
    s_branch K2_POLL
    K2_GO:
    """)
    for t4 in range(4):
        for r in range(16):
            a("v_mul_f32 v%d, v%d, v%d" % (ACC + 16 * t4 + r, ACC + 16 * t4 + r, 92 + (t4 & 1)))
    a("s_barrier")
    stamp(a, 4)
    for b in range(8):
        a("s_add_u32 m0, s78, %d" % (b * 1024))
        a("buffer_load_dwordx4 v%d, s[20:23], s84 offen sc0 sc1 lds" % (82 + b))
    AA = 16
    ZF = [128, 132, 136, 140, 208, 212, 216, 220]
    for m in range(4):
        a("s_waitcnt vmcnt(%d)" % (6 - 2 * m))
        for tt in range(2):
            f = ZF[2 * m + tt]
            for rd in range(2):
                a("ds_read_b64_tr_b16 v[%d:%d], v%d offset:%d" % (f + 2 * rd, f + 2 * rd + 1, 90 + tt, (16 * m + 4 * rd) * 128))
    for m in range(4):
        a("s_waitcnt lgkmcnt(%d)" % (12 - 4 * m))
        for dtl in range(2):
            for tt in range(2):
                c = AA + 16 * (2 * dtl + tt); A = 96 + 4 * (4 * dtl + m); B = ZF[2 * m + tt]
                a("v_mfma_f32_32x32x16_bf16 v[%d:%d], v[%d:%d], v[%d:%d], %s" %
                  (c, c + 15, A, A + 3, B, B + 3, "0" if m == 0 else "v[%d:%d]" % (c, c + 15)))
    for t4 in range(4):
        for r in range(16):
            a("v_fma_f32 v%d, v%d, v%d, v%d" % (ACC + 16 * t4 + r, AA + 16 * t4 + r, 80 + (t4 & 1), ACC + 16 * t4 + r))
    stamp(a, 5)
    a("""
    v_add_u32 v8, s78, v7
    s_lshl_b32 s79, s36, 11
    v_add_u32 v9, s79, v7
    v_add_u32 v10, 65536, v9
    """)
    for p in range(8):
        for q in range(2):
            c = ACC + 8 * p + 4 * q
            a("ds_write_b128 v8, v[%d:%d] offset:%d" % (c, c + 3, p * 2048 + q * 1024))
    a("s_waitcnt lgkmcnt(0)")
    a("s_barrier")
    for w2 in range(8):
        for q in range(2):
            d = 16 + 8 * w2 + 4 * q
            a("ds_read_b128 v[%d:%d], v%d offset:%d" % (d, d + 3, 9 if w2 < 4 else 10, (w2 & 3) * 16384 + q * 1024))
    a("""
    s_lshr_b32 s80, s36, 1
    s_and_b32 s81, s80, 1
    s_lshr_b32 s80, s80, 1
    s_lshl_b32 s82, s74, 1
    s_add_u32 s82, s82, s81
    s_mul_i32 s82, s82, 896
    s_lshl_b32 s83, s75, 1
    s_add_u32 s83, s83, s80
    s_lshl_b32 s83, s83, 6
    s_add_u32 s82, s82, s83
    s_and_b32 s83, s36, 1
    s_lshl_b32 s83, s83, 5
    s_add_u32 s82, s82, s83
    v_mul_u32_u24 v11, 57344, v12
    v_lshl_add_u32 v11, v13, 4, v11
    """)
    for w2 in range(1, 8):
        a("s_waitcnt lgkmcnt(%d)" % (2 * (7 - w2)))
        for k in range(8):
            a("v_add_f32 v%d, v%d, v%d" % (16 + k, 16 + k, 16 + 8 * w2 + k))
    for k in range(4):
        a("v_cvt_pk_bf16_f32 v%d, v%d, v%d" % (80 + k, 16 + 2 * k, 17 + 2 * k))
    a("v_permlane32_swap_b32 v80, v82")
    a("v_permlane32_swap_b32 v81, v83")
    a("buffer_store_dwordx4 v[80:83], v11, s[12:15], s82 offen")
    stamp(a, 6)
    stamp_flush(a, 1, 7)
    dbg_time(a, 3)
    a("s_endpgm")

def gen_k2_fft(a):
    if DED:
        a("s_cmp_ge_u32 s89, 225")
        a("s_cbranch_scc1 K2_END")
        a("s_mov_b32 s74, 0")
    elif "noprio" not in EXP:
        a("s_setprio 3")
    a("""
    s_lshl_b32 s73, s89, 13
    s_add_u32 s66, s73, 0x%x
    s_add_u32 s67, s66, 4096
    s_add_u32 s76, s73, 0x%x
    v_and_b32 v3, 31, v1
    v_lshrrev_b32 v4, 5, v1
    v_lshlrev_b32 v2, 6, v3
    v_lshl_add_u32 v2, v4, 4, v2
    v_lshlrev_b32 v5, 8, v3
    v_lshl_add_u32 v5, v4, 4, v5
    v_lshlrev_b32 v7, 4, v1
    v_add_u32 v6, s78, v7
    """ % (PF_OFF, WT_OFF))
    CR, CI, NCI = 16, 24, 32
    ER, EI = 40, 72
    WV = 104
    ACC = 136
    FA, FB, FC = 200, 216, 232
    PR, PI = 200, 216
    k2_gate_load(a, 8)
    for c, base, so in ((0, PR, "s66"), (1, PI, "s67")):
        for T in range(2):
            for j in range(2):
                d = base + 4 * (2 * T + j)
                a("buffer_load_dwordx4 v[%d:%d], v2, s[20:23], %s offen offset:%d" % (d, d + 3, so, T * 2048 + j * 32))
    for e in range(6):
        if e % 4 == 0:
            a("s_mov_b32 s79, 0x%x" % (TB_OFF + e * 1024))
        a("buffer_load_dwordx4 v[%d:%d], v7, s[20:23], s79 offen offset:%d" % (16 + 4 * e, 19 + 4 * e, (e % 4) * 1024))
    def tw_dma(c):
        a("s_add_u32 m0, s78, %d" % (c * 1024))
        a("s_mov_b32 s79, 0x%x" % (TB_OFF + (22 + c) * 1024))
        a("buffer_load_dwordx4 v7, s[20:23], s79 offen lds")
    for e in range(6, 22):
        if (e - 6) % 4 == 0:
            a("s_mov_b32 s79, 0x%x" % (TB_OFF + e * 1024))
        a("buffer_load_dwordx4 v[%d:%d], v7, s[20:23], s79 offen offset:%d" % (16 + 4 * e, 19 + 4 * e, ((e - 6) % 4) * 1024))
    for U in range(2):
        for q in range(4):
            d = WV + 4 * (4 * U + q)
            a("buffer_load_dwordx4 v[%d:%d], v5, s[20:23], s76 offen offset:%d" % (d, d + 3, U * 128 + q * 32))
    if "nobar" not in EXP and not DED:
        a("s_barrier")
    if "nofft" in EXP:
        a("s_waitcnt vmcnt(0)")
        a("s_branch K2_FFT_SKIP")
    stamp(a, 1)
    RE = [ACC, ACC + 16]; IM = [ACC + 32, ACC + 48]
    first = set()
    def MF(c, A, B):
        z = c not in first
        first.add(c)
        return "v_mfma_f32_32x32x16_bf16 v[%d:%d], v[%d:%d], v[%d:%d], %s" % (
            c, c + 15, A, A + 3, B, B + 3, "0" if z else "v[%d:%d]" % (c, c + 15))
    def merge(M, V, lead=1):
        n = len(M)
        k = 0
        for idx, m in enumerate(M):
            a(m)
            if idx + 1 < lead:
                continue
            tgt = (len(V) * (idx + 2 - lead)) // (n + 1 - lead)
            while k < tgt:
                a(V[k]); k += 1
        while k < len(V):
            a(V[k]); k += 1
    TWB = [248, 8]
    def twiddle(tbl, T, sign):
        L = []
        th, ph = (14, 15) if (tbl == 0 or T == 0) else (5, 6)
        for q in range(4):
            t = 248
            for k in range(4):
                kk = (32 * T if tbl == 0 else 0) + 8 * q + k
                L.append("v_fmamk_f32 v%d, v%d, %s, v%d" % (t + k, th, fl(float(kk)), ph))
            for k in range(4):
                L.append("v_sin_f32 v%d, v%d" % (t + 4 + k, t + k))
            for k in range(4):
                L.append("v_cos_f32 v%d, v%d" % (t + k, t + k))
            for k in range(4):
                xr, xi = RE[T] + 4 * q + k, IM[T] + 4 * q + k
                c, s = t + k, t + 4 + k
                L.append("v_mul_f32 v7, v%d, v%d" % (xr, s))
                L.append("v_mul_f32 v%d, v%d, v%d" % (s, xi, s))
                if sign < 0:
                    L.append("v_fma_f32 v%d, v%d, v%d, v%d" % (xr, xr, c, s))
                    L.append("v_fma_f32 v%d, v%d, v%d, -v7" % (xi, xi, c))
                else:
                    L.append("v_fma_f32 v%d, v%d, v%d, -v%d" % (xr, xr, c, s))
                    L.append("v_fma_f32 v%d, v%d, v%d, v7" % (xi, xi, c))
        return L
    def pack(dst, tiles, T, neg=False):
        n = "-" if neg else ""
        return ["v_cvt_pk_bf16_f32 v%d, %sv%d, %sv%d" % (dst + 8 * T + k, n, tiles[T] + 2 * k, n, tiles[T] + 2 * k + 1)
                for k in range(8)]
    def wmul(U):
        L = []
        for r in range(16):
            w = WV + 16 * U + r
            xr, xi = RE[U] + r, IM[U] + r
            L += ["v_lshlrev_b32 v10, 16, v%d" % w, "v_and_b32 v11, 0xffff0000, v%d" % w,
                  "v_mul_f32 v12, v%d, v11" % xr, "v_mul_f32 v13, v%d, v11" % xi,
                  "v_fma_f32 v%d, v%d, v10, -v13" % (xr, xr), "v_fma_f32 v%d, v%d, v10, v12" % (xi, xi)]
        return L
    def stepA(T):
        M = []
        for j in range(2):
            M += [MF(RE[T], PR + 4 * (2 * T + j), CR + 4 * j), MF(IM[T], PR + 4 * (2 * T + j), CI + 4 * j)]
        for j in range(2):
            M += [MF(RE[T], PI + 4 * (2 * T + j), NCI + 4 * j), MF(IM[T], PI + 4 * (2 * T + j), CR + 4 * j)]
        return M
    def stepB(U, jjs):
        M = []
        for jj in jjs:
            e = 4 * (4 * U + jj)
            M += [MF(RE[U], ER + e, FA + 4 * jj), MF(IM[U], EI + e, FA + 4 * jj),
                  MF(RE[U], EI + e, FC + 4 * jj), MF(IM[U], ER + e, FB + 4 * jj)]
        return M
    def stepC(V, jjs):
        M = []
        for jj in jjs:
            e = 4 * (4 * V + jj)
            M += [MF(RE[V], FA + 4 * jj, ER + e), MF(IM[V], FB + 4 * jj, ER + e),
                  MF(RE[V], FB + 4 * jj, EI + e), MF(IM[V], FC + 4 * jj, EI + e)]
        return M
    def stepD(V):
        M = []
        for j in range(2):
            M += [MF(RE[V], CR + 4 * j, FA + 4 * (2 * V + j)), MF(IM[V], CR + 4 * j, FB + 4 * (2 * V + j))]
        for j in range(2):
            M += [MF(RE[V], CI + 4 * j, FB + 4 * (2 * V + j)), MF(IM[V], NCI + 4 * j, FA + 4 * (2 * V + j))]
        return M
    def zout(V):
        L = []
        for c, tiles, so, o in ((0, RE, "s77", WV + 16 * V), (1, IM, "s79", WV + 16 * V + 8)):
            t = tiles[V]
            pos = {0: 0, 2: 2, 1: 4, 3: 6}
            for q in range(4):
                L.append("v_cvt_pk_bf16_f32 v%d, v%d, v%d" % (o + pos[q], t + 4 * q, t + 4 * q + 1))
                L.append("v_cvt_pk_bf16_f32 v%d, v%d, v%d" % (o + pos[q] + 1, t + 4 * q + 2, t + 4 * q + 3))
            for x, y in ((0, 2), (1, 3), (4, 6), (5, 7)):
                L.append("v_permlane32_swap_b32 v%d, v%d" % (o + x, o + y))
            L.append("buffer_store_dwordx4 v[%d:%d], v2, s[20:23], %s offen offset:%d sc0 sc1" % (o, o + 3, so, V * 2048))
            L.append("buffer_store_dwordx4 v[%d:%d], v2, s[20:23], %s offen offset:%d sc0 sc1" % (o + 4, o + 7, so, V * 2048 + 16))
        return L
    a("""
    v_cvt_f32_u32 v14, v3
    v_mul_f32 v14, %s, v14
    v_lshlrev_b32 v15, 2, v4
    v_cvt_f32_u32 v15, v15
    v_add_f32 v5, %s, v14
    v_mul_f32 v6, v15, v5
    v_mul_f32 v15, v15, v14
    """ % (fl(1.0 / 2048), fl(32.0 / 2048)))
    a("s_waitcnt vmcnt(24)")
    stamp(a, 2)
    merge(stepA(0), [])
    a("""
    v_lshlrev_b32 v2, 6, v3
    v_lshl_add_u32 v2, v4, 5, v2
    s_lshl_b32 s77, s89, 12
    s_add_u32 s77, s77, 0x%x
    """ % ZT_OFF)
    merge(stepA(1), twiddle(0, 0, -1) + pack(FA, RE, 0) + pack(FB, IM, 0) + pack(FC, IM, 0, neg=True), lead=2)
    if "fftprof" in EXP: stamp(a, 3)
    a("s_add_u32 s79, s77, %d" % (225 * 4096))
    a("s_waitcnt vmcnt(8)")
    first.clear()
    merge(stepB(0, (0, 1)), twiddle(0, 1, -1) + pack(FA, RE, 1) + pack(FB, IM, 1) + pack(FC, IM, 1, neg=True))
    merge(stepB(0, (2, 3)), [])
    a("s_waitcnt vmcnt(0)")
    merge(stepB(1, (0, 1, 2, 3)), wmul(0), lead=2)
    if "fftprof" in EXP: stamp(a, 4)
    for x in pack(FA, RE, 0) + pack(FB, IM, 0) + pack(FC, RE, 0, neg=True):
        a(x)
    first.clear()
    merge(stepC(0, (0, 1)), wmul(1) + pack(FA, RE, 1) + pack(FB, IM, 1) + pack(FC, RE, 1, neg=True))
    merge(stepC(0, (2, 3)), [])
    merge(stepC(1, (0, 1, 2, 3)), twiddle(1, 0, +1), lead=2)
    if "fftprof" in EXP: stamp(a, 5)
    for x in pack(FA, RE, 0) + pack(FB, IM, 0):
        a(x)
    first.clear()
    merge(stepD(0), twiddle(1, 1, +1) + pack(FA, RE, 1) + pack(FB, IM, 1))
    merge(stepD(1), zout(0), lead=2)
    for x in zout(1):
        a(x)
    if "fftprof" in EXP:
        stamp(a, 6)
        stamp_flush(a, 1, 7)
        a("s_endpgm")
    a("K2_FFT_SKIP:")
    a("v_mov_b32 v80, v8")
    a("v_mov_b32 v81, v9")
    a("""
    s_lshl_b32 s77, s89, 6
    s_add_u32 s77, s77, 0x%x
    v_mov_b32 v8, s77
    v_mov_b32 v9, 1
    s_waitcnt vmcnt(0)
    s_mov_b64 exec, 1
    buffer_store_dword v9, v8, s[20:23], 0 offen sc0 sc1
    s_mov_b64 exec, -1
    s_setprio 0
    s_cmp_ge_u32 s2, 224
    s_cbranch_scc1 K2_END
    """ % CNT_OFF)
    if DED:
        a("s_endpgm")
    k2_gate_fin(a)
    k2_tail_prep(a)
    for r in range(64):
        a("v_mov_b32 v%d, 0" % (144 + r))
    a("s_branch K2_TAIL")

def main(out):
    a = Asm()
    hdr = open("gated_mix__spectral_gfnet__glu_gated_geglu__prompt.s.ref").read().split("\n")
    for l in hdr:
        if l.startswith(";") and "@launch" not in l and "Override" not in l and "grid=ceil" not in l:
            a.raw(l)
    a.raw("; @launch kernel=%s grid=(256,1,1) block=(512,1,1) lds=147456" % K1)
    a.raw("; @launch kernel=%s grid=(%d,1,1) block=(512,1,1) lds=147456" % (K2, 253 if DED else 225))
    a.raw('.amdgcn_target "amdgcn-amd-amdhsa--gfx950"\n.text')
    gen_k1(a)
    gen_k2(a)
    a.raw('.section .rodata,"a"')
    a.raw(kernel_desc(K1, 224, 102))
    a.raw(kernel_desc(K2, 256, 102))
    open(out, "w").write(a.finalize())
    print("nops inserted", a.nops_inserted)

if __name__ == "__main__":
    if len(sys.argv) > 2 and sys.argv[2] == "stamp":
        STAMP = True
    main(sys.argv[1] if len(sys.argv) > 1 else "k.s")
```
